```python
import torch

def _softmax(x, axis=-1):
    return torch.softmax(x, dim=axis)

def _gelu(x):
    return torch.nn.functional.gelu(x, approximate='tanh')

def _silu(x):
    return torch.nn.functional.silu(x)

def _sigmoid(x):
    return torch.sigmoid(x)

def _layernorm(x, axis=-1, eps=1e-05):
    m = x.mean(dim=axis, keepdim=True)
    v = x.var(dim=axis, keepdim=True, unbiased=False)
    return (x - m) / torch.sqrt(v + eps)

def _scatter_add(tgt, idx, src, axis=0):
    return tgt.clone().index_add_(axis, idx, src)

def _segment_sum(src, seg, n):
    out = torch.zeros((n,) + src.shape[1:], dtype=src.dtype)
    return out.index_add_(0, seg, src)

def _pad(x, pw):
    flat = tuple((v for pair in reversed(pw) for v in pair))
    return torch.nn.functional.pad(x, flat)
kernel_name = 'concat_heads__softmax_full_mha__memory_aug_recurrent_mem_tr__prompt'

def setup_inputs():

    _w = lambda a: (lambda t: t.to(torch.bfloat16) if t.is_floating_point() else t)(torch.as_tensor(a))

    def _A_setup():
        B, S, D = (1, 2048, 640)
        return {'x': _w((lambda *s: torch.randn(*s, dtype=torch.bfloat16) * 0.2)(B, S, D)), 'wqkv': _w((lambda *s: torch.randn(*s, dtype=torch.bfloat16) * 0.2)(D, 3 * D)), 'wo': _w((lambda *s: torch.randn(*s, dtype=torch.bfloat16) * 0.05)(D, D))}
    _A_in = _A_setup()

    def _B_setup():
        B, S, Dm = (1, 2048, 640)
        H, Dh = (32, 128)
        M, seg = (8, 32)
        seg = min(seg, S)
        S = S // seg * seg
        return {'x': _w((lambda *s: torch.randn(*s, dtype=torch.bfloat16) * 0.05)(B, S, Dm)), 'mem0': _w((lambda *s: torch.randn(*s, dtype=torch.bfloat16) * 0.8)(B, M, Dm)), 'Wq': _w((lambda *s: torch.randn(*s, dtype=torch.bfloat16) * 1.6)(Dm, H, Dh) * Dm ** (-0.5)), 'Wk': _w((lambda *s: torch.randn(*s, dtype=torch.bfloat16) * 1.6)(Dm, H, Dh) * Dm ** (-0.5)), 'Wv': _w((lambda *s: torch.randn(*s, dtype=torch.bfloat16) * 0.8)(Dm, H, Dh) * Dm ** (-0.5)), 'Wo': _w((lambda *s: torch.randn(*s, dtype=torch.bfloat16) * 0.8)(H, Dh, Dm) * (H * Dh) ** (-0.5)), 'seg_len': seg}
    _B_in = _B_setup()
    return {'A_x': _A_in['x'], 'A_wqkv': _A_in['wqkv'], 'A_wo': _A_in['wo'], 'B_x': _B_in['x'], 'B_mem0': _B_in['mem0'], 'B_Wq': _B_in['Wq'], 'B_Wk': _B_in['Wk'], 'B_Wv': _B_in['Wv'], 'B_Wo': _B_in['Wo'], 'B_seg_len': _B_in['seg_len']}

def reference(A_x, A_wqkv, A_wo, B_x, B_mem0, B_Wq, B_Wk, B_Wv, B_Wo, B_seg_len):

    def _A_ref(x, wqkv, wo):
        B, S, D = x.shape
        H = 32
        Dh = D // H
        qkv = (lambda x, *d: x.permute(*d))((x @ wqkv).reshape(B, S, 3, H, Dh), 2, 0, 3, 1, 4)
        q, k, v = (qkv[0], qkv[1], qkv[2])
        scale = Dh ** (-0.5)
        scores = torch.einsum('bhqd,bhkd->bhqk', q, k) * scale
        p = _softmax(scores, axis=-1)
        o = torch.einsum('bhqk,bhkd->bhqd', p, v)
        return (lambda x, *d: x.permute(*d))(o, 0, 2, 1, 3).reshape(B, S, D) @ wo

    def _B_ref(x, mem0, Wq, Wk, Wv, Wo, seg_len):
        B, S, Dm = x.shape
        H, Dh = (Wq.shape[1], Wq.shape[2])
        M = mem0.shape[1]
        scale = Dh ** (-0.5)
        n_seg = S // seg_len
        L = M + seg_len
        idx = torch.arange(L)
        mask = (idx[:, None] < M) | (idx[:, None] >= idx[None, :])
        mem = mem0
        outs = []
        for s in range(n_seg):
            xs = x[:, s * seg_len:(s + 1) * seg_len, :].clone()
            h = torch.concatenate([mem, xs], axis=1)
            q = torch.einsum('btd,dhe->bhte', h, Wq)
            k = torch.einsum('btd,dhe->bhte', h, Wk)
            v = torch.einsum('btd,dhe->bhte', h, Wv)
            scores = torch.einsum('bhqe,bhke->bhqk', q, k) * scale
            scores = torch.where(mask[None, None], scores, -1000000000.0)
            p = _softmax(scores, axis=-1)
            o = torch.einsum('bhqk,bhke->bhqe', p, v)
            o = torch.einsum('bhte,hed->btd', o, Wo)
            mem = o[:, :M, :].clone()
            outs.append(o[:, M:, :])
        return torch.concatenate(outs, axis=1)
    a = _A_ref(A_x, A_wqkv, A_wo)
    b = _B_ref(B_x, B_mem0, B_Wq, B_Wk, B_Wv, B_Wo, B_seg_len)
    return torch.concatenate([a, b], axis=-1)
```

```python
import re

REG_RE = re.compile(r'^(v|a|s)(\d+)$')
RNG_RE = re.compile(r'^(v|a|s)\[(\d+):(\d+)\]$')

def regs_of(tok):
    tok = tok.strip()
    neg = tok.startswith('-')
    if neg: tok = tok[1:]
    if tok.startswith('|') and tok.endswith('|'): tok = tok[1:-1]
    m = REG_RE.match(tok)
    if m: return {(m.group(1), int(m.group(2)))}
    m = RNG_RE.match(tok)
    if m: return {(m.group(1), i) for i in range(int(m.group(2)), int(m.group(3)) + 1)}
    if tok == 'vcc': return {('s', 'vcc_lo'), ('s', 'vcc_hi')}
    if tok in ('vcc_lo', 'vcc_hi'): return {('s', tok)}
    if tok == 'exec': return {('s', 'exec_lo'), ('s', 'exec_hi')}
    if tok in ('exec_lo', 'exec_hi'): return {('s', tok)}
    if tok == 'm0': return {('s', 'm0')}
    return set()

TRANS = ('v_exp_f32', 'v_log_f32', 'v_rcp_f32', 'v_rsq_f32', 'v_sqrt_f32', 'v_sin_f32', 'v_cos_f32', 'v_rcp_iflag_f32')

def mfma_passes(op):
    if '32x32' in op: return 8
    if '16x16' in op: return 4
    if '4x4' in op: return 2
    raise ValueError(op)

class Ins:
    __slots__ = ('text', 'op', 'ops', 'kind', 'wr', 'rd', 'mods', 'A', 'B', 'C', 'D', 'passes', 'label', 'target', 'nops', 'data', 'dpp', 'islds')
    def __init__(self, text):
        self.text = text
        self.label = None; self.target = None
        self.wr = set(); self.rd = set(); self.kind = 'other'
        self.A = self.B = self.C = self.D = None; self.passes = 0; self.nops = 0
        self.data = set(); self.dpp = False; self.islds = False
        t = text.split(';')[0].strip()
        if t.endswith(':'):
            self.label = t[:-1]; self.kind = 'label'; self.op = ''; self.mods = []; return
        if not t or t.startswith('.'):
            self.kind = 'pseudo'; self.op = ''; self.mods = []; return
        parts = t.split(None, 1)
        op = parts[0]; self.op = op
        rest = parts[1] if len(parts) > 1 else ''
        toks = []; depth = 0; cur = ''
        for ch in rest:
            if ch in '[(': depth += 1
            if ch in '])': depth -= 1
            if ch == ',' and depth == 0: toks.append(cur.strip()); cur = ''
            else: cur += ch
        if cur.strip(): toks.append(cur.strip())
        mods = []
        if toks:
            sp = toks[-1].split()
            toks[-1] = sp[0]; mods = sp[1:]
        self.ops = toks; self.mods = mods
        R = [regs_of(x) for x in toks]
        base = op
        for suf in ('_e32', '_e64', '_dpp', '_sdwa'):
            if base.endswith(suf): base = base[:-len(suf)]
        if op.startswith('v_mfma') or op.startswith('v_smfmac'):
            self.kind = 'mfma'; self.passes = mfma_passes(op)
            self.D = R[0]; self.A = R[1]; self.B = R[2]
            if op.startswith('v_smfmac'):
                self.C = R[0]; self.B = R[2] | R[3]
            else:
                self.C = R[3]
            self.wr = set(self.D); self.rd = self.A | self.B | self.C
        elif op.startswith('v_'):
            self.kind = 'valu'
            self.dpp = any(m.startswith(('row_', 'quad_perm', 'wave_', 'bank_mask')) for m in mods) or op.endswith('_dpp')
            if 'permlane' in op and 'swap' in op:
                self.wr = R[0] | R[1]; self.rd = R[0] | R[1]
            elif base.startswith('v_cmpx'):
                self.wr = regs_of('exec') | R[0]; self.rd = set().union(*R[1:])
            elif base in ('v_add_co_u32', 'v_sub_co_u32', 'v_addc_co_u32', 'v_subb_co_u32', 'v_subrev_co_u32'):
                self.wr = R[0] | R[1]; self.rd = set().union(*R[2:])
            elif base == 'v_nop':
                pass
            else:
                self.wr = set(R[0]); self.rd = set().union(*R[1:]) if len(R) > 1 else set()
                if base in ('v_fmac_f32', 'v_mac_f32', 'v_writelane_b32', 'v_pk_fmac_f16', 'v_dot2c_f32_bf16') or self.dpp:
                    self.rd |= R[0]
        elif op.startswith('ds_'):
            self.kind = 'ds'
            if op.startswith('ds_read') or op.startswith('ds_bpermute') or op.startswith('ds_permute') or op.startswith('ds_swizzle'):
                self.wr = set(R[0]); self.rd = set().union(*R[1:])
            else:
                self.rd = set().union(*R)
        elif op.startswith('buffer_') or op.startswith('global_'):
            self.kind = 'vmem'
            self.islds = ('lds' in mods) or ('_lds_' in op)
            if op in ('buffer_inv', 'buffer_wbl2'):
                pass
            elif self.islds:
                self.rd = set().union(*R) | {('s', 'm0')}
            elif '_load' in op:
                self.wr = set(R[0]); self.rd = set().union(*R[1:])
            elif '_atomic' in op:
                self.rd = set().union(*R)
                if 'sc0' in mods: self.wr = set(R[0])
            else:
                self.rd = set().union(*R)
                if op.startswith('buffer_'): d = R[0]
                else: d = R[1]
                if 'x3' in op or 'x4' in op: self.data = set(d)
        elif op.startswith('s_'):
            self.kind = 'salu'
            if op == 's_nop':
                self.nops = int(toks[0], 0) + 1
            elif op.startswith('s_cbranch') or op == 's_branch':
                self.target = toks[0]; self.kind = 'branch'
            elif op.startswith('s_cmp') or op in ('s_waitcnt', 's_barrier', 's_sleep', 's_setprio', 's_endpgm', 's_setreg_b32', 's_bitcmp1_b32', 's_bitcmp0_b32'):
                self.rd = set().union(*R) if R else set()
            else:
                self.wr = set(R[0]) if R else set()
                self.rd = set().union(*R[1:]) if len(R) > 1 else set()
                if 'saveexec' in op: self.wr |= regs_of('exec')

    @property
    def istrans(self):
        b = self.op
        for suf in ('_e32', '_e64'):
            if b.endswith(suf): b = b[:-4]
        return b in TRANS


XDL_OVL = {2: 4, 4: 6, 8: 10, 16: 18}
XDL_AB = {2: 5, 4: 8, 8: 12, 16: 20}
XDL_WAR = {2: 1, 4: 3, 8: 7, 16: 15}

def need(prod, cons):
    n = 0
    pk, ck = prod.kind, cons.kind
    vw = {r for r in prod.wr if r[0] in 'va'}
    sw = {r for r in prod.wr if r[0] == 's'}
    if pk == 'valu':
        if ck == 'mfma' and vw & cons.rd: n = max(n, 2)
        if ck == 'valu':
            if prod.istrans and not cons.istrans and vw & cons.rd: n = max(n, 1)
            if prod.istrans and cons.istrans and vw & cons.rd: n = max(n, 1)
            if 'permlane' in cons.op and vw & cons.rd: n = max(n, 2)
            if cons.dpp and vw & cons.rd: n = max(n, 2)
            if ('readlane' in cons.op or 'readfirstlane' in cons.op) and vw & cons.rd: n = max(n, 1)
            if sw & cons.rd:
                n = max(n, 4 if ('readlane' in cons.op or 'writelane' in cons.op) else 2)
            if any(m.startswith('op_sel') or 'sdwa' in prod.op or m.startswith('dst_sel') for m in prod.mods) and vw & (cons.rd | cons.wr): n = max(n, 1)
            if sw & regs_of('exec'):
                if cons.dpp: n = max(n, 5)
                if 'permlane' in cons.op or 'lane' in cons.op: n = max(n, 4)
        if ck == 'mfma' and sw & regs_of('exec'): n = max(n, 4)
        if ck == 'vmem' and sw & cons.rd: n = max(n, 5)
        if ck in ('branch',) and ('vccz' in cons.op or 'vccnz' in cons.op) and sw & regs_of('vcc'): n = max(n, 1)
    if pk == 'mfma':
        p = prod.passes
        if ck == 'mfma':
            if cons.C and (prod.D & cons.C):
                if prod.D == cons.C and p == cons.passes: n = max(n, 2 if p == 2 else 0)
                else: n = max(n, XDL_OVL[p])
            if prod.D & (cons.A | cons.B): n = max(n, XDL_AB[p])
            if (prod.D & cons.D) and not (cons.C and prod.D == cons.C): n = max(n, XDL_OVL[p])
        elif ck in ('valu', 'vmem', 'ds'):
            if prod.D & (cons.rd | cons.wr): n = max(n, XDL_AB[p])
            if ck == 'valu' and prod.C and (prod.C & cons.wr): n = max(n, XDL_WAR[p])
            if ck in ('vmem', 'ds') and prod.C and (prod.C & cons.wr): n = max(n, XDL_WAR[p])
    if pk == 'salu':
        if ('s', 'm0') in sw and cons.islds: n = max(n, 1)
    if pk == 'vmem' and prod.data:
        if prod.data & cons.wr: n = max(n, 2 if ck in ('valu', 'mfma') else 1)
    return n

MAXD = 20

class Asm:
    def __init__(self):
        self.L = []
        self.uid = 0
    def __call__(self, s):
        for line in s.split('\n'):
            line = line.strip()
            if line: self.L.append(line)
    def lab(self, name):
        self.uid += 1
        return f'{name}_{self.uid}'
    def finish(self):
        ins = [Ins(t) for t in self.L]
        pad = [0] * len(ins)
        labels = {x.label: i for i, x in enumerate(ins) if x.label}
        incoming = {}
        def key(st): return tuple(sorted((id(p), a) for p, a in st))
        for it in range(12):
            changed = False
            st = []
            newinc = {}
            for i, x in enumerate(ins):
                if x.kind == 'label':
                    d = {}
                    for p, a in st + incoming.get(x.label, []):
                        if id(p) not in d or d[id(p)][1] > a: d[id(p)] = (p, a)
                    st = list(d.values())
                    continue
                if x.kind == 'pseudo': continue
                req = 0
                for p, a in st:
                    r = need(p, x) - a
                    if r > req: req = r
                if req > pad[i]:
                    pad[i] = req; changed = True
                adv = pad[i] + (x.nops if x.nops else 1)
                st2 = [(p, a + adv) for p, a in st if a + adv < MAXD]
                if x.kind in ('valu', 'mfma', 'vmem') or (x.kind == 'salu' and ('s', 'm0') in x.wr):
                    st2.append((x, 0))
                st = st2
                if x.kind == 'branch':
                    newinc.setdefault(x.target, []).extend(st)
                    if x.op == 's_branch': st = []
                if x.op == 's_endpgm': st = []
                if x.op in ('s_setpc_b64', 's_swappc_b64'):
                    raise ValueError('indirect jumps unsupported')
            k1 = {k: key(v) for k, v in incoming.items()}
            k2 = {k: key(v) for k, v in newinc.items()}
            incoming = newinc
            if not changed and k1 == k2: break
        out = []
        self.npad = 0
        for i, x in enumerate(ins):
            n = pad[i]
            while n > 0:
                k = min(n, 16)
                out.append(f'  s_nop {k-1}'); n -= k; self.npad += 1
            out.append(x.text if x.kind == 'label' else '  ' + x.text)
        return '\n'.join(out) + '\n'
```

```python
from common import *
from util import stamp
V_LANE = 1
XA = 4
WA = 8
DX = 12
DW = 20
XF = 32
WFR = 64
VT = 96
s_xo = 's64'; s_wo = 's65'; s_ld64 = 's66'; s_m0a = 's67'; s_cnt = 's68'
s_ob = 's69'; s_stm = 's70'; s_stn = 's71'; s_epi = 's72'; s_flag = 's73'; s_atype = 's74'; s_ld = 's75'; s_ori = 's76'
s_t0 = 's77'; s_t1 = 's78'; s_t2 = 's79'; s_t3 = 's80'

def gemm_setup(A):
    t0, t1, t2, t3 = VT, VT + 1, VT + 2, VT + 3
    A(f'''s_and_b32 {s_t0}, {s_wave}, 1
          s_lshr_b32 {s_t1}, {s_wave}, 1
          v_and_b32 v{t0}, 31, v{V_LANE}
          v_lshrrev_b32 v{t1}, 5, v{V_LANE}
          v_lshrrev_b32 v{t2}, 1, v{t0}
          v_and_b32 v{t2}, 7, v{t2}
          s_lshl_b32 {s_t2}, {s_t0}, 14
          v_lshlrev_b32 v{t0}, 7, v{t0}
          v_add_u32 v{t0}, {s_t2}, v{t0}''')
    for u in range(4):
        A(f'''v_add_u32 v{t3}, {2*u}, v{t1}
              v_xor_b32 v{t3}, v{t3}, v{t2}
              v_lshlrev_b32 v{t3}, 4, v{t3}
              v_add_u32 v{XA+u}, v{t0}, v{t3}''')
    A(f'''v_bfe_u32 v{t0}, v{V_LANE}, 2, 2
          v_lshlrev_b32 v{t1}, 3, v{t1}
          v_add_u32 v{t1}, v{t1}, v{t0}
          v_lshlrev_b32 v{t1}, 9, v{t1}
          v_add_u32 v{t1}, 0x8000, v{t1}
          v_bfe_u32 v{t2}, v{V_LANE}, 4, 1
          v_lshlrev_b32 v{t2}, 5, v{t2}
          v_and_b32 v{t3}, 3, v{V_LANE}
          v_lshlrev_b32 v{t3}, 3, v{t3}
          v_add_u32 v{t2}, v{t2}, v{t3}
          s_lshl_b32 {s_t2}, {s_t1}, 2''')
    for tn in range(4):
        A(f'''s_add_u32 {s_t3}, {s_t2}, {tn}
              s_mul_i32 {s_t3}, {s_t3}, {s_atype}
              v_add_u32 v{t3}, {s_t3}, v{t2}
              v_lshrrev_b32 v{VT+4}, 6, v{t3}
              v_xor_b32 v{VT+4}, v{VT+4}, v{t0}
              v_lshlrev_b32 v{VT+4}, 6, v{VT+4}
              v_and_b32 v{t3}, 63, v{t3}
              v_add3_u32 v{WA+tn}, v{t1}, v{VT+4}, v{t3}''')
    A(f'''v_lshrrev_b32 v{t0}, 3, v{V_LANE}
          s_lshl_b32 {s_t2}, {s_wave}, 6
          v_add_u32 v{t0}, {s_t2}, v{t0}
          s_movk_i32 {s_t3}, 1280
          v_mul_lo_u32 v{t0}, v{t0}, {s_t3}
          v_lshrrev_b32 v{t1}, 4, v{V_LANE}
          v_and_b32 v{t2}, 7, v{V_LANE}''')
    for n in range(8):
        A(f'''v_add_u32 v{t3}, {(4*n) & 7}, v{t1}
              v_xor_b32 v{t3}, v{t3}, v{t2}
              v_lshlrev_b32 v{t3}, 4, v{t3}
              v_add_u32 v{t3}, {n*10240 - (n % 4)*1024}, v{t3}
              v_add_u32 v{DX+n}, v{t0}, v{t3}''')
    A(f'''v_lshrrev_b32 v{t0}, 5, v{V_LANE}
          s_lshl_b32 {s_t2}, {s_wave}, 4
          v_add_u32 v{t1}, {s_t2}, v{t0}
          v_mul_lo_u32 v{t1}, v{t1}, {s_ld}
          v_and_b32 v{t2}, 3, v{V_LANE}
          v_lshlrev_b32 v{t2}, 4, v{t2}
          v_add_u32 v{t1}, v{t1}, v{t2}
          v_bfe_u32 v{t2}, v{V_LANE}, 2, 3''')
    for n in range(8):
        A(f'''v_add_u32 v{t3}, {(2*n) & 3}, v{t0}
              v_xor_b32 v{t3}, v{t3}, v{t2}
              v_lshlrev_b32 v{t3}, 6, v{t3}
              s_mul_i32 {s_t3}, {s_ld}, {2*n}
              s_sub_u32 {s_t3}, {s_t3}, {(n % 4)*1024}
              v_add3_u32 v{DW+n}, v{t1}, v{t3}, {s_t3}''')
    A(f'''s_lshl_b32 {s_ld64}, {s_ld}, 6
          s_lshl_b32 {s_m0a}, {s_wave}, 13''')

def dma_ops(half):
    g = []
    for n in range(8):
        pre = ''
        if n % 4 == 0:
            pre = f's_add_u32 m0, {s_m0a}, {(n//4)*4096 + half*32768}\n'
        if half == 0:
            g.append((pre, f'buffer_load_dwordx4 v{DX+n}, {srd(S_XS)}, {s_xo} offen offset:{(n%4)*1024} lds'))
        else:
            g.append((pre, f'buffer_load_dwordx4 v{DW+n}, {srd(S_WT)}, {s_wo} offen offset:{(n%4)*1024} lds'))
    return g

def frag_reads(u, st):
    r = []
    for t in range(4):
        r.append(f'ds_read_b128 {vr(XF+16*st+4*t,4)}, v{XA+u} offset:{t*4096}')
        r.append(f'ds_read_b64_tr_b16 {vr(WFR+16*st+4*t,2)}, v{WA+t} offset:{u*8192}')
        r.append(f'ds_read_b64_tr_b16 {vr(WFR+16*st+4*t+2,2)}, v{WA+t} offset:{u*8192+2048}')
    return r

import os
EXP=os.environ.get('GEXP','')
def kstep(A, ori, st, reads, dma, post=None):
    rd = list(reads); dm = list(dma)
    if 'nodma' in EXP: dm = []
    if 'nord' in EXP: rd = []
    k = 0
    for tm in range(4):
        for tn in range(4):
            acc = ar(16 * (4 * tm + tn), 16)
            x = vr(XF + 16 * st + 4 * tm, 4); w = vr(WFR + 16 * st + 4 * tn, 4)
            pre = dm[0][0] if (dm and k % 2 == 0) else ''
            if pre: A(pre)
            if ori == 0: A(f'v_mfma_f32_32x32x16_bf16 {acc}, {w}, {x}, {acc}')
            else: A(f'v_mfma_f32_32x32x16_bf16 {acc}, {x}, {w}, {acc}')
            if dm and k % 2 == 0: A(dm.pop(0)[1])
            for _ in range(2 if k < 4 else 1):
                if rd: A(rd.pop(0))
            k += 1
    if post: A(post)

def stage(A, ori, dma0, dma3, nxt):
    A('s_waitcnt lgkmcnt(0)')
    kstep(A, ori, 0, frag_reads(1, 1), dma_ops(1) if dma0 else [],
          post=(f's_add_u32 {s_wo}, {s_wo}, {s_ld64}\ns_xor_b32 {s_m0a}, {s_m0a}, 0x10000' if dma0 else None))
    A('s_waitcnt lgkmcnt(0)')
    kstep(A, ori, 1, frag_reads(2, 0), [])
    A('s_waitcnt lgkmcnt(0)')
    kstep(A, ori, 0, frag_reads(3, 1), [])
    if nxt:
        A('s_waitcnt vmcnt(0) lgkmcnt(0)\ns_barrier')
        for r in list(range(XA, XA + 4)) + list(range(WA, WA + 4)):
            A(f'v_xor_b32 v{r}, 0x10000, v{r}')
    else:
        A('s_waitcnt lgkmcnt(0)')
    kstep(A, ori, 1, frag_reads(0, 0) if nxt else [], dma_ops(0) if dma3 else [],
          post=(f's_add_u32 {s_xo}, {s_xo}, 128' if dma3 else None))

def gemm_main(A, ori):
    for pre, ins in dma_ops(0): A(pre + ins)
    for pre, ins in dma_ops(1): A(pre + ins)
    A(f'''s_add_u32 {s_xo}, {s_xo}, 128
          s_add_u32 {s_wo}, {s_wo}, {s_ld64}
          s_xor_b32 {s_m0a}, {s_m0a}, 0x10000''')
    for pre, ins in dma_ops(0): A(pre + ins)
    A(f's_add_u32 {s_xo}, {s_xo}, 128')
    for k in range(256): A(f'v_accvgpr_write_b32 a{k}, 0')
    A('s_waitcnt vmcnt(8)\ns_barrier')
    stamp(A, 9)
    for r in frag_reads(0, 0): A(r)
    lp = A.lab('gl')
    A(f's_mov_b32 {s_cnt}, 8\n{lp}:')
    stage(A, ori, True, True, True)
    A(f's_sub_u32 {s_cnt}, {s_cnt}, 1\ns_cmp_lg_u32 {s_cnt}, 0\ns_cbranch_scc1 {lp}')
    stage(A, ori, True, False, True)
    stage(A, ori, False, False, False)
    stamp(A, 10)

def gemm_epi(A, kind):
    va = VT; va2 = VT + 1; vm = VT + 2
    A(f'v_lshlrev_b32 v{va}, 4, v{V_LANE}\nv_lshlrev_b32 v{va2}, 3, v{V_LANE}')
    if kind == 'AV':
        A(f'v_and_b32 v{vm}, 31, v{V_LANE}\nv_cmp_eq_u32 vcc, 20, v{vm}\nv_mov_b32 v{vm}, 0x3f803f80')
    if kind in ('AQ', 'AK'):
        A(f'v_cmp_lt_u32 vcc, 31, v{V_LANE}\nv_mov_b32 v{vm}, {"0x3f803f80" if kind == "AK" else "0"}\nv_mov_b32 v{vm+1}, 0')
    if kind == 'AQ':
        A(f's_mov_b32 {s_t3}, {f2u(LOG2E * 20 ** -0.5)}')
    slot = 0
    for tm in range(4):
        A(f's_mul_i32 {s_t0}, {s_stm}, {tm}\ns_add_u32 {s_t0}, {s_t0}, {s_ob}')
        for tn in range(4):
            b = XF + 24 * slot; slot = (slot + 1) % 2
            n = 12 if kind in ('AQ', 'AK') else 16
            for r in range(n): A(f'v_accvgpr_read_b32 v{b+r}, a{16*(4*tm+tn)+r}')
            if kind == 'AQ':
                for r in range(n): A(f'v_mul_f32 v{b+r}, {s_t3}, v{b+r}')
            for r in range(n // 2): A(f'v_cvt_pk_bf16_f32 v{b+16+r}, v{b+2*r}, v{b+2*r+1}')
            if kind == 'AV':
                for r in range(8): A(f'v_cndmask_b32 v{b+16+r}, v{b+16+r}, v{vm}, vcc')
            if kind in ('AQ', 'AK'):
                A(f'v_cndmask_b32 v{b+20}, v{b+20}, v{vm}, vcc\nv_cndmask_b32 v{b+21}, v{b+21}, v{vm+1}, vcc')
            A(f'buffer_store_dwordx4 {vr(b+16,4)}, v{va}, {srd(S_WS)}, {s_t0} offen sc1')
            if kind in ('AQ', 'AK'):
                A(f'buffer_store_dwordx2 {vr(b+20,2)}, v{va2}, {srd(S_WS)}, {s_t0} offen offset:1024 sc1')
            else:
                A(f'buffer_store_dwordx4 {vr(b+20,4)}, v{va}, {srd(S_WS)}, {s_t0} offen offset:1024 sc1')
            if tn < 3: A(f's_add_u32 {s_t0}, {s_t0}, {s_stn}')
```

```python
from common import *
from util import *

NINF = '0xff800000'

def j4(A):
    QF = [8, 16]; KV = 32; S = [96, 112]; P = [128, 136]; O = [144, 160]
    NM = [24, 25]; THR = [26, 27]; LO = [28, 29]; T = 176
    VA16 = 4; VA8 = 5
    s_h = 's80'; s_qb = 's81'; s_kb = 's82'; s_vb = 's83'; s_t = 's84'; s_k = 's85'; s_v = 's86'; s_c = 's87'; s_T = 's88'
    A(f'''L_j4:
          s_lshr_b32 s82, {s_i}, 3
          s_add_u32 {s_h}, {s_h}, s82
          s_and_b32 {s_qb}, {s_i}, 7
          s_lshr_b32 s82, {s_h}, 3
          s_lshl_b32 s82, s82, 7
          s_add_u32 s82, s82, {F_C3}''')
    wait_words(A, 's82', 3, 512, 8)
    A(f'''v_lshlrev_b32 v{VA16}, 4, v{V_LANE}
          v_lshlrev_b32 v{VA8}, 3, v{V_LANE}
          s_mul_i32 {s_kb}, {s_h}, {64*1536}
          s_lshl_b32 {s_vb}, {s_h}, 17
          s_lshl_b32 {s_T}, {s_qb}, 3
          s_lshl_b32 s89, {s_wave}, 1
          s_add_u32 {s_T}, {s_T}, s89
          s_mul_i32 s89, {s_T}, 1536
          s_add_u32 s89, s89, {s_kb}
          s_add_u32 s89, s89, {QA}
          s_add_u32 {s_kb}, {s_kb}, {KA}
          s_add_u32 {s_vb}, {s_vb}, {VA}
          buffer_load_dwordx4 {vr(QF[0],4)}, v{VA16}, {srd(S_WS)}, s89 offen
          buffer_load_dwordx2 {vr(QF[0]+4,2)}, v{VA8}, {srd(S_WS)}, s89 offen offset:1024
          buffer_load_dwordx4 {vr(QF[1],4)}, v{VA16}, {srd(S_WS)}, s89 offen offset:1536
          buffer_load_dwordx2 {vr(QF[1]+4,2)}, v{VA8}, {srd(S_WS)}, s89 offen offset:2560''')
    for r in range(KV, KV + 64): A(f'v_mov_b32 v{r}, 0')
    for x in range(2):
        A(f'v_mov_b32 v{QF[x]+6}, 0\nv_mov_b32 v{QF[x]+7}, 0\nv_mov_b32 v{NM[x]}, 0\nv_mov_b32 v{THR[x]}, {NINF}\nv_mov_b32 v{LO[x]}, {NINF}')
        for r in range(16): A(f'v_mov_b32 v{O[x]+r}, 0')
    for r in range(16): A(f'v_mov_b32 v{S[1]+r}, {NINF}')
    def loads(st):
        b = KV + 16 * st
        A(f'''s_min_u32 s89, {s_t}, 63
              s_mul_i32 {s_k}, s89, 1536
              s_add_u32 {s_k}, {s_k}, {s_kb}
              s_lshl_b32 {s_v}, s89, 11
              s_add_u32 {s_v}, {s_v}, {s_vb}
              s_add_u32 {s_t}, {s_t}, 1
              buffer_load_dwordx4 {vr(b,4)}, v{VA16}, {srd(S_WS)}, {s_k} offen
              buffer_load_dwordx2 {vr(b+4,2)}, v{VA8}, {srd(S_WS)}, {s_k} offen offset:1024
              buffer_load_dwordx4 {vr(b+8,4)}, v{VA16}, {srd(S_WS)}, {s_v} offen
              buffer_load_dwordx4 {vr(b+12,4)}, v{VA16}, {srd(S_WS)}, {s_v} offen offset:1024''')
    def smm(x, st):
        b = KV + 16 * st
        A(f'''v_mfma_f32_32x32x16_bf16 {vr(S[x],16)}, {vr(b,4)}, {vr(QF[x],4)}, 0
              v_mfma_f32_32x32x16_bf16 {vr(S[x],16)}, {vr(b+4,4)}, {vr(QF[x]+4,4)}, {vr(S[x],16)}''')
    def pv(x, st):
        b = KV + 16 * st
        A(f'''v_mfma_f32_32x32x16_bf16 {vr(O[x],16)}, {vr(b+8,4)}, {vr(P[x],4)}, {vr(O[x],16)}
              v_mfma_f32_32x32x16_bf16 {vr(O[x],16)}, {vr(b+12,4)}, {vr(P[x]+4,4)}, {vr(O[x],16)}''')
    rare = []
    def soft(x):
        s = S[x]
        A(f'''v_max3_f32 v{T}, v{s}, v{s+1}, v{s+2}
              v_max3_f32 v{T+1}, v{s+3}, v{s+4}, v{s+5}
              v_max3_f32 v{T}, v{T}, v{s+6}, v{s+7}
              v_max3_f32 v{T+1}, v{T+1}, v{s+8}, v{s+9}
              v_max3_f32 v{T}, v{T}, v{s+10}, v{s+11}
              v_max3_f32 v{T+1}, v{T+1}, v{s+12}, v{s+13}
              v_max3_f32 v{T}, v{T}, v{s+14}, v{s+15}
              v_max_f32 v{T}, v{T}, v{T+1}
              v_cmp_gt_f32 vcc, v{T}, v{THR[x]}''')
        lr = A.lab('rr'); lb = A.lab('rb')
        A(f's_cbranch_vccnz {lr}\n{lb}:')
        rare.append((lr, lb, x))
        for r in range(16):
            A(f'v_exp_f32 v{s+r}, v{s+r}')
            if r % 2 == 1 and r >= 3: A(f'v_cvt_pk_bf16_f32 v{P[x]+(r-3)//2}, v{s+r-3}, v{s+r-2}')
        A(f'v_cvt_pk_bf16_f32 v{P[x]+7}, v{s+14}, v{s+15}')
    A(f's_mov_b32 {s_t}, 0')
    for st in range(3): loads(st)
    A(f's_mov_b32 {s_c}, 16\nL_j4_loop:')
    for st in range(4):
        A('s_waitcnt vmcnt(8)')
        smm(0, st)
        soft(1)
        pv(1, (st + 3) % 4)
        smm(1, st)
        loads((st + 3) % 4)
        soft(0)
        pv(0, st)
    A(f's_sub_u32 {s_c}, {s_c}, 1\ns_cmp_lg_u32 {s_c}, 0\ns_cbranch_scc1 L_j4_loop')
    soft(1)
    pv(1, 3)
    A(f'''s_mul_i32 s89, {s_T}, 40
          s_add_u32 s90, s89, {s_h}
          s_lshl_b32 s90, s90, 10
          s_add_u32 s90, s90, {OA}
          s_lshr_b32 s91, {s_h}, 2
          s_add_u32 s91, s91, s89
          s_add_u32 s91, s91, 32
          s_lshl_b32 s91, s91, 10
          s_add_u32 s91, s91, {OA}
          s_and_b32 s89, {s_h}, 2
          s_lshl_b32 s89, s89, 8
          s_add_u32 s91, s91, s89
          s_and_b32 s89, {s_h}, 1
          s_lshl_b32 s89, s89, 3
          s_add_u32 s91, s91, s89''')
    for x in range(2):
        o = O[x]
        A(f'''v_mov_b32 v{T}, v{o+8}
              v_mov_b32 v{T+1}, v{o+8}
              v_permlane32_swap_b32 v{T}, v{T+1}
              v_rcp_f32 v{T+1}, v{T+1}''')
        for r in range(12): A(f'v_mul_f32 v{o+r}, v{o+r}, v{T+1}')
        for r in range(6): A(f'v_cvt_pk_bf16_f32 v{P[x]+r}, v{o+2*r}, v{o+2*r+1}')
        A(f'''buffer_store_dwordx4 {vr(P[x],4)}, v{VA16}, {srd(S_WS)}, s90 offen sc1
              s_mov_b64 exec, 0xffffffff
              buffer_store_dwordx2 {vr(P[x]+4,2)}, v{VA16}, {srd(S_WS)}, s91 offen sc1
              s_mov_b64 exec, -1
              s_add_u32 s90, s90, {40*1024}
              s_add_u32 s91, s91, {40*1024}''')
    A(f's_lshl_b32 s89, {s_qb}, 7\ns_add_u32 s89, s89, {F_C4}')
    signal_add(A, 's89')
    A('s_branch L_next')
    for lr, lb, x in rare:
        s = S[x]; o = O[x]
        A(f'''{lr}:
              v_mov_b32 v{T+1}, v{T}
              v_permlane32_swap_b32 v{T}, v{T+1}
              v_max3_f32 v{T}, v{T}, v{T+1}, v{LO[x]}
              v_sub_f32 v{T+1}, v{NM[x]}, v{T}
              v_cvt_pk_bf16_f32 v{T+2}, v{T+1}, v{T+1}
              v_lshlrev_b32 v{T+2}, 16, v{T+2}
              v_sub_f32 v{T+3}, v{T+1}, v{T+2}
              v_cvt_pk_bf16_f32 v{T+3}, v{T+1}, v{T+3}
              v_and_b32 v{T+4}, 0xffff0000, v{T+3}
              v_add_f32 v{T+2}, v{T+2}, v{T+4}
              v_sub_f32 v{T+4}, v{T+2}, v{NM[x]}
              v_mov_b32 v{NM[x]}, v{T+2}
              v_min_f32 v{T+5}, 0, v{T+4}
              v_exp_f32 v{T+5}, v{T+5}
              s_mov_b32 exec_lo, 0
              v_mov_b32 v{QF[x]+4}, v{T+3}
              s_mov_b32 exec_lo, -1
              v_mov_b32 v{THR[x]}, 0x41000000
              v_mov_b32 v{LO[x]}, 0''')
        for r in range(16): A(f'v_add_f32 v{s+r}, v{s+r}, v{T+4}')
        for r in range(12): A(f'v_mul_f32 v{o+r}, v{o+r}, v{T+5}')
        A(f's_branch {lb}')

def prep(A):
    RH = 8; CO = 16; VO = 24; RA = 32; D = 40; VA16 = 4
    A(f'''L_prep:
          v_lshlrev_b32 v{VA16}, 4, v{V_LANE}
          s_mul_i32 s80, {s_wave}, 5120
          s_mov_b32 s81, 52429''')
    for n in range(5):
        A(f'''s_add_u32 s82, s80, {n*1024}
              v_add_u32 v2, s82, v{VA16}
              v_lshrrev_b32 v3, 8, v2
              v_mul_lo_u32 v3, v3, s81
              v_lshrrev_b32 v{RH+n}, 18, v3
              v_mul_u32_u24 v3, 1280, v{RH+n}
              v_sub_u32 v{CO+n}, v2, v3''')
    A(f'''v_lshrrev_b32 v2, 5, v{V_LANE}
          v_lshlrev_b32 v2, 2, v2
          v_bfe_u32 v3, v{V_LANE}, 2, 2
          v_add_u32 v2, v2, v3
          v_mul_u32_u24 v2, 1280, v2
          v_bfe_u32 v3, v{V_LANE}, 4, 1
          v_lshlrev_b32 v3, 5, v3
          v_add_u32 v2, v2, v3
          v_and_b32 v3, 3, v{V_LANE}
          v_lshlrev_b32 v3, 3, v3
          s_mul_i32 s82, {s_wave}, 320
          v_add3_u32 v{RA}, v2, v3, s82''')
    for batch in range(2):
        for e in range(5):
            bb = batch * 5 + e
            if bb == 0: mk_srd(A, S_WT, P_WO, 4096 * 1280)
            if bb == 8: mk_srd(A, S_WT, P_AWO, 640 * 1280)
            if bb in (0, 9):
                for n in range(5):
                    if bb == 0:
                        A(f'v_mul_u32_u24 v2, 1280, v{RH+n}\nv_add_u32 v{VO+n}, v2, v{CO+n}')
                    else:
                        A(f'''v_and_b32 v2, 3, v{RH+n}
                              v_bfe_u32 v3, v{RH+n}, 2, 1
                              v_mad_u32_u24 v2, v3, 40, v2
                              v_lshrrev_b32 v3, 3, v{RH+n}
                              v_mad_u32_u24 v2, v3, 20, v2
                              v_mul_u32_u24 v2, 1280, v2
                              v_add_u32 v{VO+n}, v2, v{CO+n}''')
            if bb < 8: A(f's_add_u32 s82, {s_i}, {32*bb}\ns_mul_i32 s82, s82, {16*1280}')
            elif bb == 8: A(f's_mul_i32 s82, {s_i}, {20*1280}')
            else: A(f's_and_b32 s82, {s_i}, 7\ns_mul_i32 s82, s82, {80*1280}\ns_add_u32 s82, s82, {16*1280}')
            for n in range(5):
                A(f's_add_u32 m0, s80, {e*20480 + n*1024}\nbuffer_load_dwordx4 v{VO+n}, {srd(S_WT)}, s82 offen lds')
        A('s_waitcnt vmcnt(0)\ns_barrier')
        for e in range(5):
            bb = batch * 5 + e
            if e == 3: A(f'v_add_u32 v{RA+1}, {3*20480}, v{RA}')
            for n in range(5):
                ra = RA if e < 3 else RA + 1; eo = (e if e < 3 else e - 3) * 20480
                A(f'''ds_read_b64_tr_b16 {vr(D+20*e+4*n,2)}, v{ra} offset:{eo + n*64}
                      ds_read_b64_tr_b16 {vr(D+20*e+4*n+2,2)}, v{ra} offset:{eo + n*64 + 8*1280}''')
        A('s_waitcnt lgkmcnt(0)\ns_barrier')
        for e in range(5):
            bb = batch * 5 + e
            if bb == 9: A(f's_cmp_ge_u32 {s_i}, 8\ns_cbranch_scc1 L_prep_e')
            for n in range(5):
                A(f'''s_mul_i32 s82, {s_wave}, 5
                      s_add_u32 s82, s82, {n}
                      s_lshr_b32 s83, s82, 2
                      s_mul_i32 s83, s83, 296
                      s_add_u32 s83, s83, {s_i}
                      s_add_u32 s83, s83, {32*bb}
                      s_lshl_b32 s83, s83, 2
                      s_and_b32 s82, s82, 3
                      s_add_u32 s83, s83, s82
                      s_lshl_b32 s83, s83, 10
                      s_add_u32 s83, s83, {WF}
                      buffer_store_dwordx4 {vr(D+20*e+4*n,4)}, v{VA16}, {srd(S_WS)}, s83 offen sc1''')
    A(f'L_prep_e:\ns_mov_b32 s82, {F_CP}')
    signal_add(A, 's82')
    A('s_branch L_next')

def fgemm(A):
    FR = 32; VA16 = 4
    def ld(e):
        b = FR + 24 * e
        A(f'''buffer_load_dwordx4 {vr(b,4)}, v{VA16}, {srd(S_WS)}, s80 offen
              buffer_load_dwordx4 {vr(b+4,4)}, v{VA16}, {srd(S_WS)}, s81 offen
              s_add_u32 s80, s80, 1024
              s_add_u32 s81, s81, 1024''')
        for tn in range(4):
            A(f'buffer_load_dwordx4 {vr(b+8+4*tn,4)}, v{VA16}, {srd(S_WS)}, s82 offen offset:{tn*1024}')
        A('s_add_u32 s82, s82, 4096')
    def body(load):
        for e in range(8):
            b = FR + 24 * e
            A(f's_waitcnt vmcnt({42 if load else 42-6*e})')
            for tm in range(2):
                for tn in range(4):
                    acc = ar(16 * (4 * tm + tn), 16)
                    A(f'v_mfma_f32_32x32x16_bf16 {acc}, {vr(b+8+4*tn,4)}, {vr(b+4*tm,4)}, {acc}')
            if load: ld(e)
    A(f'L_fg:\nv_lshlrev_b32 v{VA16}, 4, v{V_LANE}')
    for e in range(8): ld(e)
    for k in range(128): A(f'v_accvgpr_write_b32 a{k}, 0')
    A('s_cmp_eq_u32 s83, 1\ns_cbranch_scc1 L_fg_last\nL_fg_loop:')
    body(True)
    A('s_sub_u32 s83, s83, 1\ns_cmp_lg_u32 s83, 1\ns_cbranch_scc1 L_fg_loop\nL_fg_last:')
    body(False)
    A(f's_lshl_b32 s85, {s_wave}, 15\nv_add_u32 v5, s85, v{VA16}')
    for t in range(8):
        for q in range(4):
            A(f'ds_write_b128 v5, {ar(16*t+4*q,4)} offset:{t*4096+q*1024}')
    A(f'''s_waitcnt lgkmcnt(0)
          s_barrier
          s_lshl_b32 s85, {s_wave}, 12
          v_add_u32 v5, s85, v{VA16}
          v_add_u32 v6, 0x10000, v5''')
    for tm in range(2):
        for w in range(4):
            for q in range(4):
                A(f'ds_read_b128 {vr(FR+64*tm+16*w+4*q,4)}, v{5 if w < 2 else 6} offset:{(w%2)*32768 + tm*16384 + q*1024}')
    A(f'''v_and_b32 v7, 31, v{V_LANE}
          v_mul_u32_u24 v7, 2560, v7
          v_lshrrev_b32 v8, 5, v{V_LANE}
          v_lshlrev_b32 v8, 4, v8
          v_add_u32 v7, v7, v8
          s_mul_i32 s85, {s_i}, {64*2560}
          s_add_u32 s85, s85, s84
          s_lshl_b32 s86, {s_wave}, 6
          s_add_u32 s85, s85, s86''')
    for tm in range(2):
        b = FR + 64 * tm
        A(f's_waitcnt lgkmcnt({15 if tm == 0 else 0})')
        if tm == 0: A('s_waitcnt lgkmcnt(0)')
        for r in range(16):
            A(f'v_add_f32 v{b+r}, v{b+r}, v{b+16+r}\nv_add_f32 v{b+32+r}, v{b+32+r}, v{b+48+r}')
        for r in range(16): A(f'v_add_f32 v{b+r}, v{b+r}, v{b+32+r}')
        for r in range(8): A(f'v_cvt_pk_bf16_f32 v{b+16+r}, v{b+2*r}, v{b+2*r+1}')
        for hh in range(2):
            A(f'v_permlane32_swap_b32 v{b+16+4*hh}, v{b+16+4*hh+2}\nv_permlane32_swap_b32 v{b+16+4*hh+1}, v{b+16+4*hh+3}')
        for hh in range(2):
            A(f'buffer_store_dwordx4 {vr(b+16+4*hh,4)}, v7, {srd(S_OUT)}, s85 offen offset:{32*hh}')
        A(f's_add_u32 s85, s85, {32*2560}')
    A('s_waitcnt lgkmcnt(0)\ns_barrier\ns_branch L_next')

def j5(A):
    A(f'''L_j5:
          s_cmp_eq_u32 {s_j}, 5
          s_cbranch_scc1 L_next
          s_mov_b32 s80, {F_CP}''')
    wait_words(A, 's80', 1, 4, 32, barrier=False)
    A(f's_lshr_b32 s80, {s_i}, 2\ns_lshl_b32 s80, s80, 7\ns_add_u32 s80, s80, {F_C4}')
    wait_words(A, 's80', 1, 4, 32)
    A(f'''s_lshl_b32 s85, {s_wave}, 3
          s_add_u32 s85, s85, 8
          s_cmp_eq_u32 {s_wave}, 0
          s_cselect_b32 s85, 0, s85
          s_cselect_b32 s83, 2, 1
          s_mul_i32 s80, {s_i}, 80
          s_add_u32 s80, s80, s85
          s_lshl_b32 s80, s80, 10
          s_add_u32 s80, s80, {OA}
          s_add_u32 s81, s80, {40*1024}
          s_mul_i32 s82, {s_j}, 296
          s_add_u32 s82, s82, s85
          s_add_u32 s82, s82, 256
          s_lshl_b32 s82, s82, 12
          s_add_u32 s82, s82, {WF}
          s_lshl_b32 s84, {s_j}, 8
          s_branch L_fg''')

def j7(A):
    A(f'''L_j7:
          s_cmp_eq_u32 {s_j}, 5
          s_cbranch_scc1 L_next
          s_lshl_b32 s80, {s_i}, 6
          s_add_u32 s80, s80, {F_C6}''')
    wait_words(A, 's80', 1, 4, 6)
    A(f'''s_lshl_b32 s85, {s_wave}, 6
          s_mov_b32 s83, 8
          s_lshl_b32 s80, {s_i}, 9
          s_add_u32 s80, s80, s85
          s_lshl_b32 s80, s80, 10
          s_add_u32 s80, s80, {OX}
          s_add_u32 s81, s80, {256*1024}
          s_mul_i32 s82, {s_j}, 296
          s_add_u32 s82, s82, s85
          s_lshl_b32 s82, s82, 12
          s_add_u32 s82, s82, {WF}
          s_lshl_b32 s84, {s_j}, 8
          s_add_u32 s84, s84, 1280
          s_branch L_fg''')

def j6(A, OPT):
    Q = 32; K = 64; V = 96; KMr = 128; VMr = 160; SX = 176; SM = 192; O = 32; PX = 208; PM = 216; T = 224
    VA16 = 4; VKM = 5; VVM = 6; VQ = 7
    s_p = 's80'; s_seg = 's81'; s_h = 's82'; s_b = 's83'
    A(f'''L_j6:
          v_lshlrev_b32 v{VA16}, 4, v{V_LANE}
          v_and_b32 v2, 7, v{V_LANE}
          v_lshrrev_b32 v3, 5, v{V_LANE}
          v_lshlrev_b32 v{VKM}, 3, v3
          v_add_u32 v{VKM}, v{VKM}, v2
          v_lshlrev_b32 v{VKM}, 4, v{VKM}
          v_and_b32 v2, 31, v{V_LANE}
          v_lshlrev_b32 v{VVM}, 3, v2
          v_lshlrev_b32 v{VQ}, 10, v3
          v_add_u32 v{VVM}, v{VVM}, v{VQ}
          v_lshlrev_b32 v3, 2, v3
          v_sub_u32 v{VQ}, v2, v3
          s_lshl_b32 {s_p}, {s_j}, 2
          s_add_u32 {s_p}, {s_p}, {s_wave}
          L_j6_loop:
          s_lshr_b32 {s_seg}, {s_p}, 5
          s_lshl_b32 s84, {s_i}, 1
          s_add_u32 {s_seg}, {s_seg}, s84
          s_and_b32 {s_h}, {s_p}, 31
          s_lshr_b32 s84, {s_seg}, 3
          s_lshl_b32 s85, s84, 7
          s_lshr_b32 s86, {s_h}, 1
          s_lshl_b32 s86, s86, 2
          s_add_u32 s85, s85, s86
          s_add_u32 s85, s85, {F_T1}''')
    wait_words(A, 's85', 2, 64, 1, barrier=False, allwaves=True)
    A(f's_lshl_b32 s85, s84, 6\ns_add_u32 s85, s85, s86\ns_add_u32 s85, s85, {F_T2}')
    wait_words(A, 's85', 1, 4, 1, barrier=False, allwaves=True)
    A(f'''s_lshl_b32 {s_b}, {s_seg}, 5
          s_add_u32 {s_b}, {s_b}, {s_h}
          s_lshl_b32 s84, {s_b}, 13''')
    for base, reg in ((QX, Q), (KX, K), (VX, V)):
        A(f's_add_u32 s85, s84, {base}\ns_add_u32 s86, s85, 4096')
        for u in range(8):
            A(f'buffer_load_dwordx4 {vr(reg+4*u,4)}, v{VA16}, {srd(S_WS)}, {"s85" if u < 4 else "s86"} offen offset:{(u%4)*1024}')
    for tn in range(4): A(f'v_mov_b32 v{VMr+4*tn+2}, 0\nv_mov_b32 v{VMr+4*tn+3}, 0')
    A(f'v_mov_b32 v{PM+2}, 0\nv_mov_b32 v{PM+3}, 0')
    if OPT.get('nochain', '0') != '1':
        A(f's_lshl_b32 s85, {s_h}, 2\ns_add_u32 s85, s85, {F_CH}\ns_add_u32 s86, {s_seg}, 1')
        wait_words(A, 's85', 2, 128, 's86', barrier=False, allwaves=True, sleep=2)
    A(f's_lshl_b32 s84, {s_b}, 11\ns_add_u32 s85, s84, {KM}\ns_add_u32 s86, s84, {VM}')
    for u in range(8):
        A(f'buffer_load_dwordx4 {vr(KMr+4*u,4)}, v{VKM}, {srd(S_WS)}, s85 offen offset:{u*256}')
    for tn in range(4):
        A(f'buffer_load_dwordx2 {vr(VMr+4*tn,2)}, v{VVM}, {srd(S_WS)}, s86 offen offset:{tn*256}')
    A('s_waitcnt vmcnt(20)')
    for u in range(8):
        A(f'v_mfma_f32_32x32x16_bf16 {vr(SX,16)}, {vr(K+4*u,4)}, {vr(Q+4*u,4)}, {vr(SX,16) if u else 0}')
    A('s_waitcnt vmcnt(4)')
    for u in range(8):
        A(f'v_mfma_f32_32x32x16_bf16 {vr(SM,16)}, {vr(KMr+4*u,4)}, {vr(Q+4*u,4)}, {vr(SM,16) if u else 0}')
    A(f'v_mov_b32 v{T+2}, {NINF}')
    for r in range(16):
        A(f'v_cmp_le_i32 vcc, {8*(r//4) + r%4}, v{VQ}\nv_cndmask_b32 v{SX+r}, v{T+2}, v{SX+r}, vcc')
    A(f'v_max3_f32 v{T}, v{SX}, v{SX+1}, v{SX+2}')
    for r in range(3, 15, 2): A(f'v_max3_f32 v{T}, v{T}, v{SX+r}, v{SX+r+1}')
    A(f'''v_max3_f32 v{T}, v{T}, v{SX+15}, v{SM}
          v_max3_f32 v{T}, v{T}, v{SM+1}, v{SM+2}
          v_max_f32 v{T}, v{T}, v{SM+3}
          v_mov_b32 v{T+1}, v{T}
          v_permlane32_swap_b32 v{T}, v{T+1}
          v_max_f32 v{T}, v{T}, v{T+1}
          s_mov_b32 s84, {f2u(LOG2E * 128 ** -0.5)}
          v_mul_f32 v{T}, s84, v{T}''')
    regs = [SX + r for r in range(16)] + [SM + r for r in range(4)]
    for r in regs: A(f'v_fma_f32 v{r}, v{r}, s84, -v{T}')
    for r in regs: A(f'v_exp_f32 v{r}, v{r}')
    for r in range(8): A(f'v_cvt_pk_bf16_f32 v{PX+r}, v{SX+2*r}, v{SX+2*r+1}')
    for r in range(2): A(f'v_cvt_pk_bf16_f32 v{PM+r}, v{SM+2*r}, v{SM+2*r+1}')
    A('s_waitcnt vmcnt(0)')
    for tn in range(4):
        o = vr(O + 16 * tn, 16)
        A(f'''v_mfma_f32_32x32x16_bf16 {o}, {vr(V+8*tn,4)}, {vr(PX,4)}, 0
              v_mfma_f32_32x32x16_bf16 {o}, {vr(V+8*tn+4,4)}, {vr(PX+4,4)}, {o}
              v_mfma_f32_32x32x16_bf16 {o}, {vr(VMr+4*tn,4)}, {vr(PM,4)}, {o}''')
    A(f'v_add_f32 v{T}, v{regs[0]}, v{regs[1]}')
    for r in regs[2:]: A(f'v_add_f32 v{T}, v{T}, v{r}')
    A(f'''v_mov_b32 v{T+1}, v{T}
          v_permlane32_swap_b32 v{T}, v{T+1}
          v_add_f32 v{T}, v{T}, v{T+1}
          v_rcp_f32 v{T}, v{T}
          s_lshl_b32 s84, {s_b}, 13
          s_add_u32 s85, s84, {OX}
          s_add_u32 s86, s85, 4096''')
    for tn in range(4):
        o = O + 16 * tn
        for r in range(16): A(f'v_mul_f32 v{o+r}, v{o+r}, v{T}')
        for r in range(8): A(f'v_cvt_pk_bf16_f32 v{KMr+8*tn+r}, v{o+2*r}, v{o+2*r+1}')
        for u in range(2):
            A(f'buffer_store_dwordx4 {vr(KMr+8*tn+4*u,4)}, v{VA16}, {srd(S_WS)}, {"s85" if tn < 2 else "s86"} offen offset:{((2*tn+u)%4)*1024} sc1')
    A(f'''s_add_u32 {s_p}, {s_p}, 24
          s_cmp_lt_u32 {s_p}, 64
          s_cbranch_scc1 L_j6_loop
          s_lshl_b32 s80, {s_i}, 6
          s_add_u32 s80, s80, {F_C6}''')
    signal_add(A, 's80')
    A('s_branch L_next')

def emit(A, OPT):
    j4(A); prep(A); j5(A); j7(A); fgemm(A); j6(A, OPT)
```

```python
from common import *
import util
IDX = 0; LANE = 1; VA16 = 2; QKW = 3; TRA = 4; KXA = 5; RG1 = 6; RS = 7
VXR = 8
ACC = {('q',0):16, ('q',1):20, ('k',0):24, ('k',1):28, ('v',0):32, ('v',1):36}
AL = 40; AR = 60; T = 80
KXF = [40, 44, 48, 52, 56, 80, 84, 88]
QF = 16; KMF = 60
X0 = 92; X1 = 76; XM = 36; VMP = 32
WF_R = [40, 48, 60, 68, 80, 16]
PX = 24; PML = 28; PMH = 30; O0 = 56; O1 = 88
OA_ = 24; OT = [32, 36, 76, 92, 56]; R4 = 88
KXB = 0; QB = 8192; KB = 10240; OB = 12288; WB = 16384
s_c='s71'; s_h='s72'; s_step='s73'; s_ml='s74'; s_mr='s75'; s_pl='s76'; s_pr='s77'; s_rw='s78'; s_rw2='s79'; s_rr='s80'
s_kx='s81'; s_vx='s82'; s_pub='s83'; s_red='s84'; s_slow='s85'; s_fa='s86'; s_fb='s87'
M_N8='s[88:89]'; M_LO='s[90:91]'; M_FL='s[92:93]'; s_sc='s94'; s_dl='s70'; s_ch='s69'; s_ow='s68'; s_w512='s67'
t0='s95'; t1='s96'; t2='s97'
WS = srd(S_WS)

frag = {}
chunks = [('q',k) for k in range(10)] + [('k',k) for k in range(10)] + [('v',k) for k in range(4,10)]
order = []
for i,(m,k) in enumerate(chunks):
    for t in range(2):
        f = 2*i + t
        frag[(m,k,t)] = ('a', 8*f) if f < 32 else ('v', 96 + 8*(f-32))
def fr(m,k,t):
    c,b = frag[(m,k,t)]
    return f'{c}[{b}:{b+7}]'
def smf(acc, a, b): return f'v_smfmac_f32_16x16x64_bf16 {vr(acc,4)}, {vr(a,4)}, {b}, v{IDX}'

class Prof:
    on = False
def prof(A, k):
    if not Prof.on: return
    A(f'''s_memtime s[98:99]
          s_waitcnt lgkmcnt(0)
          s_sub_u32 s99, s98, s62
          s_mov_b32 s62, s98
          s_add_u32 s{40+k}, s{40+k}, s99''')

def mix(A, mf, fill, per=3, start=0):
    d = {}
    for p, t in fill: d.setdefault(p, []).append(t)
    for t in d.get(-1, []): A(t)
    for i, m in enumerate(mf):
        A(m)
        for t in d.get(i, []): A(t)

def spread(items, first, per):
    return [(first + i // per, t) for i, t in enumerate(items)]

def halfadd(a, b):
    return [f'v_permlane32_swap_b32 v{a+r}, v{b+r}' for r in range(4)] + \
           [f'v_pk_add_f32 {vr(a,2)}, {vr(a,2)}, {vr(b,2)}', f'v_pk_add_f32 {vr(a+2,2)}, {vr(a+2,2)}, {vr(b+2,2)}']

def prologue(A, count_all):
    D = 40; DW_ = 44; D2 = 48; RQ = 52; RW = 54; R2 = 56; X = 58
    A(f'''s_lshr_b32 {s_c}, s64, 5
          s_and_b32 {s_h}, s64, 31
          s_setprio 2
          v_lshlrev_b32 v{VA16}, 4, v{LANE}
          v_lshrrev_b32 v{X}, 4, v{LANE}
          v_and_b32 v{X+1}, 15, v{LANE}
          v_and_b32 v{X+2}, 1, v{X}
          v_lshlrev_b32 v{X+2}, 5, v{X+2}
          v_lshlrev_b32 v{X+3}, 4, v{X+1}
          v_xor_b32 v{X+2}, v{X+2}, v{X+3}''')
    for n in range(4):
        A(f'''v_xor_b32 v{X+3}, {n*64}, v{X+2}
              v_add_u32 v{X+4}, {4*n}, v{X}
              v_lshlrev_b32 v{X+5}, 13, v{X+4}
              v_add_u32 v{X+5}, v{X+5}, v{X+3}
              v_add_u32 v{D+n}, {-n*1024 & 0xffffffff}, v{X+5}
              v_mul_u32_u24 v{X+5}, 1280, v{X+4}
              v_add_u32 v{X+5}, v{X+5}, v{X+3}
              v_add_u32 v{DW_+n}, {-n*1024 & 0xffffffff}, v{X+5}''')
    A(f'''v_lshrrev_b32 v{X+4}, 3, v{LANE}
          v_and_b32 v{X+2}, 7, v{LANE}
          v_lshlrev_b32 v{X+2}, 4, v{X+2}
          v_lshrrev_b32 v{X+3}, 5, v{LANE}
          v_lshlrev_b32 v{X+3}, 5, v{X+3}
          v_xor_b32 v{X+2}, v{X+2}, v{X+3}''')
    for n in range(4):
        A(f'''v_xor_b32 v{X+3}, {(n&1)*64}, v{X+2}
              v_add_u32 v{X+5}, {8*n}, v{X+4}
              v_mul_u32_u24 v{X+5}, 1280, v{X+5}
              v_add_u32 v{X+5}, v{X+5}, v{X+3}
              v_add_u32 v{D2+n}, {-n*1024 & 0xffffffff}, v{X+5}''')
    e, hf, B0, B1, c8 = X, X+1, X+2, X+3, X+4
    u, w_ = X+5, X+6
    A(f'''v_bfe_u32 v{e}, v{LANE}, 2, 1
          v_bfe_u32 v{hf}, v{LANE}, 3, 1
          v_bfe_u32 v{B0}, v{LANE}, 4, 1
          v_lshrrev_b32 v{B1}, 5, v{LANE}
          v_and_b32 v{c8}, 3, v{LANE}
          v_lshlrev_b32 v{c8}, 3, v{c8}
          s_lshl_b32 {t0}, {s_wave}, 1''')
    A(f'''v_lshl_add_u32 v{u}, v{B1}, 4, v{e}
          v_lshl_add_u32 v{u}, v{B0}, 2, v{u}
          v_lshl_add_u32 v{u}, v{hf}, 3, v{u}
          v_lshl_add_u32 v{w_}, v{B0}, 1, v{e}
          v_lshl_add_u32 v{w_}, v{hf}, 2, v{w_}
          v_xor_b32 v{w_}, {t0}, v{w_}
          v_lshl_add_u32 v{w_}, v{w_}, 5, v{c8}
          v_lshl_add_u32 v{RQ}, v{u}, 8, v{w_}''')
    A(f'''v_lshl_add_u32 v{u}, v{B0}, 4, v{e}
          v_lshl_add_u32 v{u}, v{B1}, 3, v{u}
          v_lshl_add_u32 v{u}, v{hf}, 2, v{u}
          v_lshl_add_u32 v{w_}, v{hf}, 1, v{e}
          v_lshl_add_u32 v{w_}, v{B1}, 2, v{w_}
          v_xor_b32 v{w_}, {t0}, v{w_}
          v_lshl_add_u32 v{w_}, v{w_}, 5, v{c8}
          v_lshl_add_u32 v{RW}, v{u}, 8, v{w_}
          v_lshl_add_u32 v{w_}, v{B1}, 1, v{hf}
          v_xor_b32 v{w_}, {s_wave}, v{w_}
          v_lshl_add_u32 v{w_}, v{w_}, 5, v{c8}
          v_lshl_add_u32 v{R2}, v{u}, 7, v{w_}''')
    s_lo = 's74'; s_ro = 's75'; s_wo = 's76'; s_w2 = 's77'; s_m0 = 's78'
    A(f'''s_lshl_b32 {t0}, {s_wave}, 17
          s_lshl_b32 {t1}, {s_h}, 8
          s_add_u32 {t0}, {t0}, {t1}
          s_mul_i32 {t1}, {s_c}, {5*524288}
          s_add_u32 {s_lo}, {t0}, {t1}
          s_sub_u32 {t1}, {5*524288}, {t1}
          s_add_u32 {s_ro}, {t0}, {t1}
          s_mul_i32 {t0}, {s_h}, {128*1280}
          s_mul_i32 {t1}, {s_c}, 640
          s_add_u32 {t0}, {t0}, {t1}
          s_mul_i32 {t1}, {s_wave}, {16*1280}
          s_add_u32 {s_wo}, {t0}, {t1}
          s_add_u32 {s_w2}, {s_wo}, {t1}
          s_add_u32 {s_w2}, {s_w2}, 512
          s_lshl_b32 {s_m0}, {s_wave}, 12''')
    SR = {'q': 44, 'k': 48, 'v': 80, 'o': 84}
    mk_srd(A, 44, P_WQ, 640*8192); mk_srd(A, 48, P_WK, 640*8192); mk_srd(A, 80, P_WV, 640*8192); mk_srd(A, 84, P_WO, 4096*1280)
    allc = chunks + [('o',0,0),('o',0,1),('o',1,0),('o',1,1),('o2',)] + [('v',k) for k in range(4)]
    def dma(idx):
        ch = allc[idx]; slot = (idx + 1) % 9
        A(f's_add_u32 m0, {s_m0}, {WB + slot*16384}')
        if ch[0] in 'qkv':
            k = ch[1]
            A(f's_add_u32 {t0}, {s_lo if k < 5 else s_ro}, {(k % 5)*524288}')
            for n in range(4): A(f'buffer_load_dwordx4 v{D+n}, {srd(SR[ch[0]])}, {t0} offen offset:{n*1024} lds')
        elif ch[0] == 'o':
            A(f's_add_u32 {t0}, {s_wo}, {ch[1]*256 + ch[2]*64*1280}')
            for n in range(4): A(f'buffer_load_dwordx4 v{DW_+n}, {srd(84)}, {t0} offen offset:{n*1024} lds')
        else:
            for n in range(4): A(f'buffer_load_dwordx4 v{D2+n}, {srd(84)}, {s_w2} offen offset:{n*1024} lds')
    def trq(base_reg, slot, dst):
        A(f'v_add_u32 v{X}, {WB + slot*16384}, v{base_reg}\nv_xor_b32 v{X+1}, 32, v{X}')
        for t in range(2):
            c, b = dst(t)
            for a in range(2):
                for bb in range(2):
                    A(f'ds_read_b64_tr_b16 {c}[{b+4*a+2*bb}:{b+4*a+2*bb+1}], v{X+t} offset:{a*8192 + bb*512}')
    for i in range(8): dma(i)
    for i in range(26):
        A('s_waitcnt vmcnt(28) lgkmcnt(0)\ns_barrier')
        dma(i + 8)
        m, k = chunks[i]
        trq(RQ, (i + 1) % 9, lambda t: frag[(m, k, t)])
    A('s_waitcnt lgkmcnt(0)\ns_barrier')
    dma(34)
    G, N = X, X+1
    A(f'''v_lshrrev_b32 v{G}, 4, v{LANE}
          v_and_b32 v{N}, 15, v{LANE}
          v_mov_b32 v{IDX}, 0x4444
          v_mov_b32 v{X+2}, 0xeeee
          v_cmp_lt_u32 vcc, 7, v{N}
          v_cndmask_b32 v{IDX}, v{IDX}, v{X+2}, vcc
          v_lshrrev_b32 v{X+2}, 1, v{G}
          v_and_b32 v{X+3}, 1, v{G}
          v_lshl_add_u32 v{X+4}, v{X+2}, 4, v{N}
          v_lshlrev_b32 v{X+4}, 4, v{X+4}
          v_lshl_add_u32 v{X+4}, v{X+3}, 3, v{X+4}
          s_lshl_b32 {s_w512}, {s_wave}, 9
          s_add_u32 {t0}, {s_w512}, {QB}
          v_add_u32 v{QKW}, {t0}, v{X+4}
          v_lshrrev_b32 v{X+4}, 2, v{N}
          v_lshl_add_u32 v{X+4}, v{X+2}, 4, v{X+4}
          v_lshl_add_u32 v{X+4}, v{X+3}, 2, v{X+4}
          v_lshlrev_b32 v{X+4}, 4, v{X+4}
          v_and_b32 v{X+5}, 1, v{N}
          v_lshl_add_u32 v{TRA}, v{X+5}, 3, v{X+4}
          v_and_b32 v{X+4}, 8, v{N}
          v_add_u32 v{X+4}, v{X+4}, v{N}
          v_lshlrev_b32 v{X+4}, 4, v{X+4}
          v_lshl_add_u32 v{KXA}, v{G}, 9, v{X+4}
          v_lshrrev_b32 v{X+4}, 3, v{N}
          v_and_b32 v{X+5}, 7, v{N}
          v_lshlrev_b32 v{X+5}, 4, v{X+5}
          v_lshl_add_u32 v{X+5}, v{X+4}, 12, v{X+5}
          v_lshl_add_u32 v{RS}, v{X+3}, 3, v{X+5}
          v_lshl_add_u32 v{RS}, v{X+2}, 2, v{RS}
          v_lshl_add_u32 v{X+5}, v{X+3}, 16, v{X+5}
          v_lshl_add_u32 v{X+5}, v{X+2}, 13, v{X+5}
          s_lshl_b32 {t0}, {s_wave}, 14
          v_add_u32 v{RG1}, {t0}, v{X+5}
          s_mul_i32 {s_fa}, {s_wave}, 20480
          s_add_u32 {s_fa}, {s_fa}, {WB}
          s_lshl_b32 {s_fb}, {s_wave}, 14
          s_add_u32 {s_fb}, {s_fb}, {WB + 81920}''')
    A('s_waitcnt vmcnt(0)\ns_barrier')
    A(f'v_mov_b32 v{LANE}, v{RQ}')
    A(f'v_mov_b32 v88, v{RW}\nv_mov_b32 v89, v{R2}')
    dreg = [8 + 8*f for f in range(10)]
    def trq2(base_reg, slot, regs):
        A(f'v_add_u32 v90, {WB + slot*16384}, v{base_reg}\nv_xor_b32 v91, 32, v90')
        for t in range(2):
            for a in range(2):
                for bb in range(2):
                    b = regs[t]
                    A(f'ds_read_b64_tr_b16 {vr(b+4*a+2*bb,2)}, v{90+t} offset:{a*8192 + bb*512}')
    for s in range(4): trq2(88, s, dreg[2*s:2*s+2])
    A(f'v_add_u32 v90, {WB + 4*16384}, v89')
    for ks in range(2):
        for a in range(2):
            for bb in range(2):
                A(f'ds_read_b64_tr_b16 {vr(dreg[8+ks]+4*a+2*bb,2)}, v90 offset:{ks*8192 + a*4096 + bb*256}')
    A(f's_waitcnt lgkmcnt(0)\ns_barrier\nv_add_u32 v92, {s_fa}, v{VA16}')
    for f in range(10):
        A(f'ds_write_b128 v92, {vr(dreg[f],4)} offset:{f*2048}\nds_write_b128 v92, {vr(dreg[f]+4,4)} offset:{f*2048+1024}')
    A('s_waitcnt lgkmcnt(0)')
    for s in range(4): trq2(LANE, 5 + s, dreg[2*s:2*s+2])
    A(f's_waitcnt lgkmcnt(0)\ns_barrier\nv_add_u32 v92, {s_fb}, v{VA16}')
    for f in range(8):
        A(f'ds_write_b128 v92, {vr(dreg[f],4)} offset:{f*2048}\nds_write_b128 v92, {vr(dreg[f]+4,4)} offset:{f*2048+1024}')
    A(f's_waitcnt lgkmcnt(0)\nv_lshrrev_b32 v{LANE}, 4, v{VA16}')
    A(f'v_mov_b32 v8, v2\nv_mov_b32 v9, v3\ns_mov_b32 s62, 0\ns_mov_b32 s63, 0')
    count_all(A)
    A(f'''v_mov_b32 v2, v8
          v_mov_b32 v3, v9
          s_or_b32 {s_slow}, s66, s67
          s_lshl_b32 {s_w512}, {s_wave}, 9
          s_mov_b32 {s_step}, 0
          s_mul_i32 {t0}, {s_c}, 5120
          s_add_u32 {s_ml}, {t0}, {MEML}
          s_sub_u32 {t1}, 5120, {t0}
          s_add_u32 {s_mr}, {t1}, {MEMR}
          s_lshl_b32 {t1}, {s_wave}, 5
          s_add_u32 {t1}, {t1}, {s_h}
          s_lshl_b32 {t2}, {t1}, 7
          s_add_u32 {s_pl}, {s_ml}, {t2}
          s_add_u32 {s_pr}, {s_pl}, {MEMR - MEML}
          s_cmp_lt_u32 {t1}, 40
          s_cselect_b32 {s_red}, 1, 0
          s_mul_i32 {s_rw}, {s_c}, 327680
          s_add_u32 {s_rw}, {s_rw}, {RING}
          s_lshl_b32 {t2}, {t1}, 12
          s_add_u32 {s_rr}, {s_rw}, {t2}
          s_lshl_b32 {t2}, {s_h}, 7
          s_add_u32 {s_rw}, {s_rw}, {t2}
          s_lshl_b32 {t2}, {s_wave}, 13
          s_add_u32 {s_rw2}, {s_rw}, {t2}
          s_add_u32 {s_rw2}, {s_rw2}, {32*4096}
          s_mov_b32 {s_dl}, 163840
          s_lshl_b32 {t2}, {s_h}, 13
          s_lshl_b32 {t0}, {s_wave}, 11
          s_add_u32 {t2}, {t2}, {t0}
          s_add_u32 {s_kx}, {t2}, {KX}
          s_add_u32 {s_vx}, {t2}, {VX}
          s_lshl_b32 {s_pub}, {s_h}, 11
          s_mov_b32 {t2}, {VM}
          s_cmp_eq_u32 {s_c}, 0
          s_cselect_b32 {t2}, {KM - OB}, {t2}
          s_add_u32 {s_pub}, {s_pub}, {t2}
          s_lshl_b32 {s_ch}, s64, 2
          s_add_u32 {s_ch}, {s_ch}, {F_CH}
          s_add_u32 {s_ow}, {s_w512}, {OB}
          s_mov_b32 s88, 0x00ff00ff
          s_mov_b32 s89, 0x00ff00ff
          s_mov_b32 s90, -1
          s_mov_b32 s91, 0
          s_cmp_eq_u32 {s_wave}, 2
          s_cselect_b32 s92, 1, 0
          s_mov_b32 s93, 0
          s_mov_b32 {s_sc}, {f2u(LOG2E * 128 ** -0.5)}''')
    mk_srd(A, 44, P_MEM0, 10240)
    A(f'''s_cmp_eq_u32 {s_red}, 0
          s_cbranch_scc1 C_nopub0
          s_lshl_b32 {t1}, {t1}, 4
          s_mul_i32 {t0}, {s_c}, 640
          s_add_u32 {t1}, {t1}, {t0}
          s_mov_b64 exec, 0xff
          v_mul_u32_u24 v8, 1280, v{LANE}
          buffer_load_dwordx4 v[12:15], v8, {srd(44)}, {t1} offen
          s_waitcnt vmcnt(0)
          buffer_store_dwordx4 v[12:15], v{VA16}, {WS}, {s_pl} offen sc1
          buffer_store_dwordx4 v[12:15], v{VA16}, {WS}, {s_pr} offen sc1
          s_mov_b64 exec, -1
          C_nopub0:
          s_add_u32 {s_pl}, {s_pl}, 10240
          s_add_u32 {s_pr}, {s_pr}, 10240''')

def flagwait(A, name):
    A(f'''s_lshr_b32 {t1}, {s_h}, 1
          s_lshl_b32 {t1}, {t1}, 2
          s_add_u32 {t0}, {t0}, {t1}
          s_add_u32 {t0}, {t0}, {F_T1}
          s_mov_b64 exec, 3
          v_lshlrev_b32 v41, 2, v{VA16}
          {name}:
          buffer_load_dword v40, v41, {WS}, {t0} offen sc1
          s_waitcnt vmcnt(0)
          v_cmp_eq_u32 vcc, 0, v40
          s_cbranch_vccz {name}_d
          s_sleep 1
          s_sub_u32 {s_bud}, {s_bud}, 1
          s_cbranch_scc0 {name}
          s_mov_b32 {s_bud}, 0
          {name}_d:
          s_mov_b64 exec, -1''')

def kx_dma():
    return [f's_lshl_b32 m0, {s_wave}, 11',
            f'buffer_load_dwordx4 v{VA16}, {WS}, {s_kx} offen lds',
            f'buffer_load_dwordx4 v{VA16}, {WS}, {s_kx} offen offset:1024 lds',
            f's_add_u32 {s_kx}, {s_kx}, {32*8192}']
def vx_load(tmp):
    return [f'v_and_b32 v{tmp}, 0x300, v{VA16}', f'v_add_u32 v{tmp}, v{tmp}, v{VA16}',
            f'buffer_load_dwordx4 {vr(VXR,4)}, v{tmp}, {WS}, {s_vx} offen',
            f'buffer_load_dwordx4 {vr(VXR+4,4)}, v{tmp}, {WS}, {s_vx} offen offset:256',
            f's_add_u32 {s_vx}, {s_vx}, {32*8192}']
def fread(dst, areg, f):
    return [f'ds_read_b128 {vr(dst,4)}, v{areg} offset:{f*2048}', f'ds_read_b128 {vr(dst+4,4)}, v{areg} offset:{f*2048+1024}']

def poll5(A, name, base, soff, tmp, ool, issue=True):
    def loads():
        A(f's_add_u32 {t0}, {soff}, 4096')
        for l in range(5):
            A(f'buffer_load_dwordx4 {vr(base+4*l,4)}, v{VA16}, {WS}, {soff if l < 4 else t0} offen offset:{(l%4)*1024} sc1')
    if issue:
        A(f'{name}:'); loads()
    else:
        A(f'{name}_c:')
    for l in range(5):
        b = base + 4*l
        A(f's_waitcnt vmcnt({4-l})')
        if l == 0: A(f'v_max3_u32 v{tmp}, v{b}, v{b+1}, v{b+2}\nv_max_u32 v{tmp}, v{tmp}, v{b+3}')
        else: A(f'v_max3_u32 v{tmp}, v{tmp}, v{b}, v{b+1}\nv_max3_u32 v{tmp}, v{tmp}, v{b+2}, v{b+3}')
    A(f'v_cmp_eq_u32 vcc, -1, v{tmp}\ns_cbranch_vccnz {name}_r\n{name}_d:')
    def o():
        A(f'{name}_r:\ns_sub_u32 {s_bud}, {s_bud}, 1')
        if issue:
            A(f's_cbranch_scc0 {name}')
        else:
            A(f's_cbranch_scc1 {name}_x'); loads(); A(f's_branch {name}_c\n{name}_x:')
        A(f's_mov_b32 {s_bud}, 0\ns_branch {name}_d')
    ool.append(o)

def emit(A, OPT, count_all):
    Prof.on = OPT.get('prof', '0') == '1'
    ool = []
    util.stamp(A, 1)
    prologue(A, count_all)
    A(f's_mov_b32 {t0}, 0'); flagwait(A, 'C_fw0')
    for x in kx_dma() + vx_load(40): A(x)
    if Prof.on:
        for k in range(12): A(f's_mov_b32 s{40+k}, 0')
        A('s_memtime s[98:99]\ns_waitcnt lgkmcnt(0)\ns_mov_b32 s62, s98')
        if util.DEV['stamp']:
            A(f's_memrealtime s[52:53]\ns_waitcnt lgkmcnt(0)')
    A('C_top:')
    for r in range(16, 40): A(f'v_mov_b32 v{r}, 0')
    A(f'v_add_u32 v79, {s_fb}, v{VA16}')
    for x in fread(AR, 79, 2) + fread(AR+8, 79, 3) + fread(T, 79, 0) + fread(T+8, 79, 1): A(x)
    A(f'''s_add_u32 {t0}, {s_step}, 1
          s_and_b32 {t1}, {t0}, 7
          s_cmp_lg_u32 {t1}, 0
          s_cbranch_scc1 C_nofw
          s_cmp_eq_u32 {t0}, 64
          s_cbranch_scc1 C_nofw
          s_lshl_b32 {t0}, {t0}, 4''')
    flagwait(A, 'C_fw1')
    A('C_nofw:')
    prof(A, 0)
    poll5(A, 'C_lp', AL, s_ml, 78, ool)
    prof(A, 1)
    A(f's_waitcnt lgkmcnt(0)\nv_mov_b32 v{LANE}, v79')
    FB = LANE
    A(smf(ACC['v',0], AL+4, vr(AR,8))); A(smf(ACC['v',1], AL+4, vr(AR+8,8)))
    A(smf(ACC['v',0], AL, vr(T,8))); A(smf(ACC['v',1], AL, vr(T+8,8)))
    qk = [smf(ACC[m,t], AL+4*k, fr(m,k,t)) for k in range(5) for m in 'qk' for t in range(2)]
    rl = [f's_add_u32 {t0}, {s_mr}, 4096'] + [f'buffer_load_dwordx4 {vr(AR+4*l,4)}, v{VA16}, {WS}, {s_mr if l < 4 else t0} offen offset:{(l%4)*1024} sc1' for l in range(5)]
    RPOS = int(OPT.get('rpos', '4'))
    f1 = spread(fread(T, FB, 4) + fread(T+8, FB, 5), -1, 4)
    mix(A, qk[:10], f1 + (spread(rl, RPOS, 2) if RPOS < 10 else []))
    A('s_waitcnt lgkmcnt(0)')
    A(smf(ACC['v',0], AL+8, vr(T,8))); A(smf(ACC['v',1], AL+8, vr(T+8,8)))
    mix(A, qk[10:], spread(fread(T, FB, 6) + fread(T+8, FB, 7), -1, 4) + (spread(rl, RPOS-10, 2) if RPOS >= 10 else []))
    A('s_waitcnt lgkmcnt(0)')
    A(smf(ACC['v',0], AL+12, vr(T,8))); A(smf(ACC['v',1], AL+12, vr(T+8,8)))
    A(smf(ACC['v',0], AL+16, fr('v',4,0))); A(smf(ACC['v',1], AL+16, fr('v',4,1)))
    A('s_barrier')
    for kp in range(4):
        for t in range(2):
            A(f'ds_read_b128 {vr(KXF[2*kp+t],4)}, v{KXA} offset:{KXB + kp*2048 + t*128}')
    prof(A, 2)
    poll5(A, 'C_rp', AR, s_mr, 94, ool, issue=False)
    prof(A, 3)
    mq = [smf(ACC['q',t], AR+4*k, fr('q',5+k,t)) for k in range(5) for t in range(2)]
    mk = [smf(ACC['k',t], AR+4*k, fr('k',5+k,t)) for k in range(5) for t in range(2)]
    mv = [smf(ACC['v',t], AR+4*k, fr('v',5+k,t)) for k in range(5) for t in range(2)]
    def post(m, off):
        a = ACC[m,0]; b = ACC[m,1]
        return halfadd(a, b) + [f'v_cvt_pk_bf16_f32 v{b}, v{a}, v{a+1}', f'v_cvt_pk_bf16_f32 v{b+1}, v{a+2}, v{a+3}',
                                f'ds_write_b64 v{QKW}, {vr(b,2)} offset:{off}']
    mix(A, mq + mk + mv, spread(post('q', 0), 12, 2) + spread(post('k', KB-QB), 21, 3))
    A('s_waitcnt lgkmcnt(0)\ns_barrier')
    prof(A, 4)
    for kp in range(4):
        for base, reg in ((QB, QF), (KB, KMF)):
            A(f'ds_read_b64_tr_b16 {vr(reg+4*kp,2)}, v{TRA} offset:{base + kp*512}')
            A(f'ds_read_b64_tr_b16 {vr(reg+4*kp+2,2)}, v{TRA} offset:{base + kp*512 + 128}')
    a = ACC['v',0]; b = ACC['v',1]
    for x in halfadd(a, b): A(x)
    A(f'v_cvt_pk_bf16_f32 v{VMP}, v{a}, v{a+1}\nv_cvt_pk_bf16_f32 v{VMP+1}, v{a+2}, v{a+3}')
    def mm(d, x, y, first): return f'v_mfma_f32_16x16x32_bf16 {vr(d,4)}, {vr(x,4)}, {vr(y,4)}, {0 if first else vr(d,4)}'
    for kp in range(4):
        A(f's_waitcnt lgkmcnt({14-4*kp})')
        A(mm(X0, KXF[2*kp], QF+4*kp, kp == 0)); A(mm(X1, KXF[2*kp+1], QF+4*kp, kp == 0))
        A(f's_waitcnt lgkmcnt({12-4*kp})')
        A(mm(XM, KMF+4*kp, QF+4*kp, kp == 0))
    OW = 35; FA = LANE
    A(f'''v_lshrrev_b32 v{OW}, 1, v{VA16}
          v_and_b32 v{OW}, 0x180, v{OW}
          v_sub_u32 v{OW}, v{VA16}, v{OW}
          v_add_u32 v{OW}, {s_ow}, v{OW}
          s_cmp_lg_u32 {s_c}, 0
          s_cbranch_scc1 C_pubv
          v_add_u32 v34, {s_w512}, v{TRA}
          ds_read_b64_tr_b16 v[40:41], v34 offset:{KB}
          ds_read_b64_tr_b16 v[42:43], v34 offset:{KB+128}
          s_waitcnt lgkmcnt(0)
          s_mov_b64 exec, {M_N8}
          buffer_store_dwordx4 v[40:43], v{OW}, {WS}, {s_pub} offen sc1
          s_mov_b64 exec, -1
          C_pubd:
          s_add_u32 {s_pub}, {s_pub}, 65536
          s_cmp_eq_u32 {s_step}, 63
          s_cbranch_scc1 C_fin
          s_mov_b64 exec, {M_FL}
          v_mov_b32 v44, {s_step}
          v_mov_b32 v45, 0
          buffer_store_dword v44, v45, {WS}, {s_ch} offen sc1
          s_mov_b64 exec, -1''')
    def o_pubv():
        A(f'''C_pubv:
              v_subrev_u32 v34, {QB}, v{QKW}
              v_and_b32 v40, 8, v34
              v_lshrrev_b32 v34, 1, v34
              v_and_b32 v34, 0xfff8, v34
              v_lshl_add_u32 v34, v40, 7, v34
              buffer_store_dwordx2 {vr(VMP,2)}, v34, {WS}, {s_pub} offen sc1
              s_branch C_pubd''')
    ool.append(o_pubv)
    for x in kx_dma(): A(x)
    A(f'v_add_u32 v{FA}, {s_fa}, v{VA16}')
    prof(A, 5)
    m = 34; m2 = PML
    wpre = []
    for f in range(6): wpre += fread(WF_R[f], FA, f)
    xs = [X0+r for r in range(4)] + [X1+r for r in range(4)] + [XM+r for r in range(4)]
    A(f'''v_max3_f32 v{m}, v{xs[0]}, v{xs[1]}, v{xs[2]}
          v_max3_f32 v{m2}, v{xs[4]}, v{xs[5]}, v{xs[6]}
          v_max3_f32 v{m}, v{m}, v{xs[3]}, v{xs[7]}
          v_max3_f32 v{m2}, v{m2}, v{xs[8]}, v{xs[9]}
          v_max3_f32 v{m}, v{m}, v{xs[10]}, v{xs[11]}
          v_max_f32 v{m}, v{m}, v{m2}
          v_mov_b32 v{m2}, v{m}''')
    A(wpre[0]); A(wpre[1])
    A(f'v_permlane32_swap_b32 v{m}, v{m2}\nv_max_f32 v{m}, v{m}, v{m2}\nv_mov_b32 v{m2}, v{m}')
    A(wpre[2]); A(wpre[3])
    A(f'v_permlane16_swap_b32 v{m}, v{m2}\nv_max_f32 v{m}, v{m}, v{m2}\nv_mul_f32 v{m}, {s_sc}, v{m}')
    for r in xs: A(f'v_fma_f32 v{r}, v{r}, {s_sc}, -v{m}')
    k = 4
    for i, r in enumerate(xs):
        A(f'v_exp_f32 v{r}, v{r}')
        if k < 12: A(wpre[k]); k += 1
    A(f'''v_cvt_pk_bf16_f32 v{PX}, v{X0}, v{X0+1}
          v_cvt_pk_bf16_f32 v{PX+1}, v{X0+2}, v{X0+3}
          v_cvt_pk_bf16_f32 v{PX+2}, v{X1}, v{X1+1}
          v_cvt_pk_bf16_f32 v{PX+3}, v{X1+2}, v{X1+3}
          v_cvt_pk_bf16_f32 v{PMH}, v{XM}, v{XM+1}
          v_cvt_pk_bf16_f32 v{PMH+1}, v{XM+2}, v{XM+3}''')
    A(mm(O0, VXR, PX, True))
    A(f'v_cndmask_b32 v{PML}, 0, v{PMH}, {M_LO}\nv_cndmask_b32 v{PML+1}, 0, v{PMH+1}, {M_LO}')
    A(mm(O1, VXR+4, PX, True))
    A(f'v_cndmask_b32 v{PMH}, v{PMH}, 0, {M_LO}\nv_cndmask_b32 v{PMH+1}, v{PMH+1}, 0, {M_LO}')
    A(f'''v_pk_add_f32 {vr(X0,2)}, {vr(X0,2)}, {vr(X0+2,2)}
          v_pk_add_f32 {vr(X1,2)}, {vr(X1,2)}, {vr(X1+2,2)}
          v_pk_add_f32 {vr(XM,2)}, {vr(XM,2)}, {vr(XM+2,2)}
          v_mfma_f32_16x16x16_bf16 {vr(O0,4)}, {vr(VMP,2)}, {vr(PML,2)}, {vr(O0,4)}
          v_pk_add_f32 {vr(X0,2)}, {vr(X0,2)}, {vr(X1,2)}
          v_add_f32 v{XM}, v{XM}, v{XM+1}
          v_add_f32 v{X0}, v{X0}, v{X0+1}
          v_mfma_f32_16x16x16_bf16 {vr(O1,4)}, {vr(VMP,2)}, {vr(PMH,2)}, {vr(O1,4)}
          v_fma_f32 v{m}, v{XM}, 0.5, v{X0}
          v_mov_b32 v{X0}, v{m}''')
    for x in vx_load(X1): A(x)
    A(f'''v_permlane32_swap_b32 v{m}, v{X0}
          v_add_f32 v{m}, v{m}, v{X0}
          v_mov_b32 v{X0}, v{m}
          v_mov_b32 v{XM}, 0
          v_mov_b32 v{XM+1}, 0
          v_permlane16_swap_b32 v{m}, v{X0}
          v_add_f32 v{m}, v{m}, v{X0}
          v_rcp_f32 v{m}, v{m}
          v_mov_b32 v{XM+2}, 0
          v_mov_b32 v{XM+3}, 0''')
    for o in (O0, O1):
        for r in range(4): A(f'v_mul_f32 v{o+r}, v{o+r}, v{m}')
    A(f'''v_cvt_pk_bf16_f32 v{PX}, v{O0}, v{O0+1}
          v_cvt_pk_bf16_f32 v{PX+1}, v{O0+2}, v{O0+3}
          v_cvt_pk_bf16_f32 v{PX+2}, v{O1}, v{O1+1}
          v_cvt_pk_bf16_f32 v{PX+3}, v{O1+2}, v{O1+3}
          s_mov_b64 exec, {M_N8}
          ds_write_b128 v{OW}, {vr(PX,4)}
          s_mov_b64 exec, -1''')
    for t in (2, 3, 4, 0):
        for r in range(4): A(f'v_mov_b32 v{OT[t]+r}, 0')
    A('s_waitcnt lgkmcnt(0)\ns_barrier')
    prof(A, 6)
    A(f'ds_read_b128 {vr(OA_,4)}, v{VA16} offset:{OB}\nds_read_b128 {vr(OA_+4,4)}, v{VA16} offset:{OB+1024}')
    seq = [(0,0),(1,0),(0,1),(1,1),(2,0),(3,0),(2,1),(3,1),(4,0),(4,1)]
    wreg = WF_R + WF_R[:4]
    mo = [smf(OT[t], OA_+4*ks, vr(wreg[f],8)) for f,(t,ks) in enumerate(seq)]
    fl = [(-1, 's_waitcnt lgkmcnt(1)'), (1, 's_waitcnt lgkmcnt(4)')]
    for f in range(4):
        for x in fread(wreg[f], FA, 6+f): fl.append((f, x))
    fl.sort(key=lambda p: (p[0], 'waitcnt' in p[1]))
    h01 = halfadd(OT[0], OT[1]) + [f'v_cvt_pk_bf16_f32 v{R4}, v{OT[0]}, v{OT[0]+1}', f'v_cvt_pk_bf16_f32 v{R4+1}, v{OT[0]+2}, v{OT[0]+3}']
    fl += [(5, 's_waitcnt lgkmcnt(6)'), (6, 's_waitcnt lgkmcnt(4)'), (7, 's_waitcnt lgkmcnt(2)'), (8, 's_waitcnt lgkmcnt(0)')]
    fl += spread(h01, 6, 3)
    mix(A, mo, fl)
    for x in halfadd(OT[2], OT[3]): A(x)
    q = OT[4]
    A(f'''v_cvt_pk_bf16_f32 v{R4+2}, v{OT[2]}, v{OT[2]+1}
          v_cvt_pk_bf16_f32 v{R4+3}, v{OT[2]+2}, v{OT[2]+3}
          v_permlane32_swap_b32 v{q}, v{q+2}
          v_permlane32_swap_b32 v{q+1}, v{q+3}
          v_permlane16_swap_b32 v{R4}, v{R4+2}
          v_permlane16_swap_b32 v{R4+1}, v{R4+3}
          v_pk_add_f32 {vr(q,2)}, {vr(q,2)}, {vr(q+2,2)}
          s_cmp_lg_u32 {s_slow}, 0
          s_cbranch_scc1 C_ps
          buffer_store_dwordx4 {vr(R4,4)}, v{RG1}, {WS}, {s_rw} offen
          v_cvt_pk_bf16_f32 v{q}, v{q}, v{q+1}
          buffer_store_dword v{q}, v{RS}, {WS}, {s_rw2} offen
          C_psd:''')
    def o_ps():
        A(f'''C_ps:
              buffer_store_dwordx4 {vr(R4,4)}, v{RG1}, {WS}, {s_rw} offen sc1
              v_cvt_pk_bf16_f32 v{q}, v{q}, v{q+1}
              buffer_store_dword v{q}, v{RS}, {WS}, {s_rw2} offen sc1
              s_branch C_psd''')
    ool.append(o_ps)
    prof(A, 7)
    A(f's_cmp_eq_u32 {s_red}, 0\ns_cbranch_scc1 C_nored')
    RD = 40; SEL = 60; RAc = 64; NEG = 68; tt = 72
    def rloads():
        for i in range(4): A(f'buffer_load_dwordx4 {vr(RD+4*i,4)}, v{VA16}, {WS}, {s_rr} offen offset:{i*1024} sc1')
    rloads()
    A(f'''v_bfe_u32 v{tt}, v{VA16}, 4, 1
          v_lshlrev_b32 v{tt}, 4, v{tt}
          v_mov_b32 v{tt+1}, 0x3f80
          v_lshlrev_b32 v{tt}, v{tt}, v{tt+1}
          v_bfe_u32 v{tt+1}, v{VA16}, 5, 2''')
    for d in range(4):
        A(f'v_cmp_eq_u32 vcc, {d}, v{tt+1}\nv_cndmask_b32 v{SEL+d}, 0, v{tt}, vcc\nv_mov_b32 v{NEG+d}, -1')
    A('C_rd_c:')
    for i in range(4):
        b = RD + 4*i
        A(f's_waitcnt vmcnt({3-i})')
        A(mm(RAc, b, SEL, i == 0))
        if i == 0: A(f'v_max3_u32 v{tt}, v{b}, v{b+1}, v{b+2}\nv_max_u32 v{tt}, v{tt}, v{b+3}')
        else: A(f'v_max3_u32 v{tt}, v{tt}, v{b}, v{b+1}\nv_max3_u32 v{tt}, v{tt}, v{b+2}, v{b+3}')
    A(f'''v_cmp_eq_u32 vcc, -1, v{tt}
          s_cbranch_vccnz C_rd_r
          C_rd_d:
          v_permlane32_swap_b32 v{RAc}, v{RAc+2}
          v_permlane32_swap_b32 v{RAc+1}, v{RAc+3}
          v_pk_add_f32 {vr(RAc,2)}, {vr(RAc,2)}, {vr(RAc+2,2)}
          v_cvt_pk_bf16_f32 v{RAc}, v{RAc}, v{RAc+1}
          s_mov_b64 exec, {M_N8}
          buffer_store_dword v{RAc}, v{RS}, {WS}, {s_pr} offen sc1
          s_cmp_lg_u32 {s_slow}, 0
          s_cbranch_scc1 C_rs
          buffer_store_dword v{RAc}, v{RS}, {WS}, {s_pl} offen
          s_mov_b64 exec, -1''')
    for i in range(4): A(f'buffer_store_dwordx4 {vr(NEG,4)}, v{VA16}, {WS}, {s_rr} offen offset:{i*1024}')
    A('C_nored:')
    def o_rd():
        A(f'C_rd_r:\ns_sub_u32 {s_bud}, {s_bud}, 1\ns_cbranch_scc1 C_rd_x')
        rloads()
        A(f's_branch C_rd_c\nC_rd_x:\ns_mov_b32 {s_bud}, 0\ns_branch C_rd_d')
        A(f'C_rs:\nbuffer_store_dword v{RAc}, v{RS}, {WS}, {s_pl} offen sc1\ns_mov_b64 exec, -1')
        for i in range(4): A(f'buffer_store_dwordx4 {vr(NEG,4)}, v{VA16}, {WS}, {s_rr} offen offset:{i*1024} sc1')
        A('s_branch C_nored')
    ool.append(o_rd)
    prof(A, 8)
    A(f'''s_add_u32 {s_rw}, {s_rw}, {s_dl}
          s_add_u32 {s_rw2}, {s_rw2}, {s_dl}
          s_add_u32 {s_rr}, {s_rr}, {s_dl}
          s_sub_u32 {s_dl}, 0, {s_dl}
          s_add_u32 {s_ml}, {s_ml}, 10240
          s_add_u32 {s_mr}, {s_mr}, 10240
          s_add_u32 {s_pl}, {s_pl}, 10240
          s_add_u32 {s_pr}, {s_pr}, 10240
          s_add_u32 {s_step}, {s_step}, 1
          s_branch C_top
          C_fin:
          s_waitcnt vmcnt(0)
          s_barrier
          s_mov_b64 exec, {M_FL}
          v_mov_b32 v92, 64
          v_mov_b32 v93, 0
          buffer_store_dword v92, v93, {WS}, {s_ch} offen sc1
          s_mov_b64 exec, -1''')
    if Prof.on:
        A(f'''s_memrealtime s[54:55]
              s_lshl_b32 {t0}, {s_wg}, 9
              s_lshl_b32 {t1}, {s_wave}, 6
              s_add_u32 {t0}, {t0}, {t1}
              s_add_u32 {t0}, {t0}, {DBGT + 256}
              s_waitcnt lgkmcnt(0)
              s_mov_b64 exec, 1
              v_mov_b32 v93, 0''')
        for k in range(16):
            A(f'v_mov_b32 v92, s{40+k}\nbuffer_store_dword v92, v93, {WS}, {t0} offen offset:{4*k}')
        A('s_mov_b64 exec, -1')
    A('s_branch L_exit')
    for o in ool: o()
```

```python
from asmlib import Asm
NAME = 'concat_heads__softmax_full_mha__memory_aug_recurrent_mem_tr__prompt'
MB = 1 << 20
FLAGS = 0
F_T1 = 0
F_T2 = 1024
F_C3 = 2048
F_C4 = 4096
F_CP = 5120
F_C6 = 6144
F_CH = 16384
F_X = 10496
SENT = 65536
RING = SENT
MEML = SENT + 655360
MEMR = MEML + 655360
REP = 655360
DBGT = 95 * MB
KX = 4 * MB; VX = 20 * MB; QX = 36 * MB; OX = 52 * MB
KM = 68 * MB; VM = 72 * MB
QA = 76 * MB; KA = 79 * MB; VA = 82 * MB; OA = 86 * MB
WF = 89 * MB
WS_BYTES = 256 * MB
P_AX, P_AWQKV, P_AWO, P_BX, P_MEM0, P_WQ, P_WK, P_WV, P_WO, P_SEG, P_OUT, P_DBG, P_WS = [8 + 2 * k for k in range(13)]
S_WS = 36; S_OUT = 40; S_XS = 44; S_WT = 48; S_DB = 52
s_bud = 's56'; s_wave = 's57'; s_j = 's58'; s_i = 's59'; s_rnd = 's60'; s_wg = 's61'
def srd(b): return f's[{b}:{b+3}]'
def mk_srd(A, b, p, nbytes):
    A(f'''s_mov_b32 s{b}, s{p}
          s_mov_b32 s{b+1}, s{p+1}
          s_mov_b32 s{b+2}, {hex(nbytes)}
          s_mov_b32 s{b+3}, 0x20000''')
def vr(b, n): return f'v[{b}:{b+n-1}]' if n > 1 else f'v{b}'
def ar(b, n): return f'a[{b}:{b+n-1}]' if n > 1 else f'a{b}'
LOG2E = 1.4426950408889634
import struct
def f2u(x): return hex(struct.unpack('<I', struct.pack('<f', x))[0])
```

```python
from common import *
V_LANE = 1
VTMP = 2
DEV = {'stamp': False}

def stamp(A, idx, allwaves=False):
    if not DEV['stamp']: return
    sk = A.lab('stk')
    A(f'''s_cmp_lg_u32 {s_wave}, 0
          s_cbranch_scc1 {sk}
          {DEV.get("clk","s_memrealtime")} s[98:99]
          s_lshl_b32 s97, {s_wg}, 9
          s_add_u32 s97, s97, {DBGT + idx*8}
          s_waitcnt lgkmcnt(0)
          v_mov_b32 v2, s98
          v_mov_b32 v3, s99
          s_mov_b64 s[98:99], exec
          s_mov_b64 exec, 1
          v_mov_b32 v0, 0
          buffer_store_dwordx2 v[2:3], v0, {srd(S_WS)}, s97 offen
          s_mov_b64 exec, s[98:99]
          {sk}:''')

def signal_add(A, soff):
    sk = A.lab('sg')
    A(f'''s_waitcnt vmcnt(0) lgkmcnt(0)
          s_barrier
          s_cmp_lg_u32 {s_wave}, 0
          s_cbranch_scc1 {sk}
          s_mov_b64 exec, 1
          v_mov_b32 v2, 1
          v_mov_b32 v3, 0
          buffer_atomic_add v2, v3, {srd(S_WS)}, {soff} offen sc1
          s_mov_b64 exec, -1
          {sk}:''')

def wait_words(A, soff, nlanes, stride, val, barrier=True, allwaves=False, sleep=4):
    sk = A.lab('wt'); lp = A.lab('wl')
    if not allwaves:
        A(f's_cmp_lg_u32 {s_wave}, 0\ns_cbranch_scc1 {sk}')
    A(f'''s_mov_b64 exec, {hex((1 << nlanes) - 1)}
          v_mul_u32_u24 v3, {stride}, v{V_LANE}
          {lp}:
          buffer_load_dword v2, v3, {srd(S_WS)}, {soff} offen sc1
          s_waitcnt vmcnt(0)
          v_cmp_gt_u32 vcc, {val}, v2
          s_cbranch_vccz {lp}_d
          s_sleep {sleep}
          s_sub_u32 {s_bud}, {s_bud}, 1
          s_cbranch_scc0 {lp}
          s_mov_b32 {s_bud}, 0
          {lp}_d:
          s_mov_b64 exec, -1
          {sk}:''')
    if barrier: A('s_barrier')
```

```python
import sys
from common import *
from util import *
import util
import bulk_gemm as G
OPT = dict(a.split('=') for a in sys.argv[2:] if '=' in a)
util.DEV['stamp'] = OPT.get('stamp', '0') == '1'
if OPT.get('clk'): util.DEV['clk'] = 's_memtime'
NOCHAIN = OPT.get('nochain', '0') == '1'
LASTR = int(OPT.get('lastr', '99'))

A = Asm()
KL = NAME + '_kernel'

def startup(A):
    A(f'''s_cmp_ge_u32 s2, 256
          s_cbranch_scc1 L_exit
          s_mov_b32 {s_wg}, s2
          s_load_dwordx16 s[8:23], s[0:1], 0
          s_load_dwordx8 s[24:31], s[0:1], 64
          s_load_dwordx2 s[32:33], s[0:1], 96
          v_lshrrev_b32 v2, 6, v0
          v_and_b32 v{V_LANE}, 63, v0
          v_readfirstlane_b32 {s_wave}, v2
          s_mov_b32 {s_bud}, 200000
          s_waitcnt lgkmcnt(0)''')
    mk_srd(A, S_WS, P_WS, WS_BYTES)
    mk_srd(A, S_OUT, P_OUT, 2048 * 1280 * 2)
    mk_srd(A, S_DB, P_DBG, 256)
    stamp(A, 0)
    A(f'''v_mov_b32 v4, -1
          v_mov_b32 v5, -1
          v_mov_b32 v6, -1
          v_mov_b32 v7, -1
          v_mov_b32 v8, 0
          v_mov_b32 v9, 0
          v_mov_b32 v10, 0
          v_mov_b32 v11, 0
          s_lshl_b32 s62, {s_wave}, 10
          v_lshlrev_b32 v2, 4, v{V_LANE}
          v_add_u32 v2, s62, v2
          s_mul_i32 s62, {s_wg}, 7680
          s_add_u32 s62, s62, {SENT}
          s_add_u32 s63, s62, 4096
          buffer_store_dwordx4 v[4:7], v2, {srd(S_WS)}, s62 offen sc1
          v_cmp_gt_u32 vcc, 3584, v2
          s_and_saveexec_b64 s[64:65], vcc
          buffer_store_dwordx4 v[4:7], v2, {srd(S_WS)}, s63 offen sc1
          s_mov_b64 exec, s[64:65]
          v_cmp_gt_u32 vcc, 64, v2
          s_and_saveexec_b64 s[64:65], vcc
          s_lshl_b32 s62, {s_wg}, 6
          buffer_store_dwordx4 v[8:11], v2, {srd(S_WS)}, s62 offen sc1
          s_mov_b64 exec, s[64:65]
          s_waitcnt vmcnt(0)
          s_barrier
          s_cmp_lg_u32 {s_wave}, 0
          s_cbranch_scc1 L_role_bc
          s_getreg_b32 s62, hwreg(HW_REG_XCC_ID)
          s_and_b32 s62, s62, 15
          s_lshl_b32 s63, s62, 2
          s_mov_b64 exec, 1
          v_mov_b32 v2, 1
          v_mov_b32 v3, 0
          buffer_atomic_add v2, v3, {srd(S_DB)}, s63 offen sc0 sc1
          s_waitcnt vmcnt(0)
          v_readfirstlane_b32 s63, v2
          s_mov_b64 exec, -1
          s_cmp_ge_u32 s62, 2
          s_cbranch_scc1 L_role_wait
          s_cmp_ge_u32 s63, 32
          s_cbranch_scc1 L_role_wait
          s_lshl_b32 s64, s62, 5
          s_add_u32 s64, s64, s63
          s_branch L_role_put
          L_role_wait:''')
    count_all(A)
    A(f'''s_cmp_ge_u32 s65, s66
          s_cbranch_scc1 L_role_n0
          s_sub_u32 s64, 32, s66
          s_add_u32 s64, s64, s65
          s_branch L_role_put
          L_role_n0:
          s_sub_u32 s65, s65, s66
          s_cmp_ge_u32 s65, s67
          s_cbranch_scc1 L_role_n1
          s_sub_u32 s64, 64, s67
          s_add_u32 s64, s64, s65
          s_branch L_role_put
          L_role_n1:
          s_sub_u32 s65, s65, s67
          s_add_u32 s64, s65, 64
          L_role_put:
          v_mov_b32 v2, s64
          v_mov_b32 v3, 0
          ds_write_b32 v3, v2
          s_waitcnt lgkmcnt(0)
          L_role_bc:
          s_barrier
          v_mov_b32 v3, 0
          ds_read_b32 v2, v3
          s_waitcnt lgkmcnt(0)
          v_readfirstlane_b32 s64, v2
          s_barrier
          s_cmp_lt_u32 s64, 64
          s_cbranch_scc1 L_chain
          s_sub_u32 s64, s64, 64
          s_lshr_b32 {s_j}, s64, 5
          s_and_b32 {s_i}, s64, 31
          s_min_u32 {s_j}, {s_j}, 5''')

def count_all(A):
    lp = A.lab('cnt')
    A(f'''s_mov_b64 exec, 0xffff
          v_lshlrev_b32 v3, 2, v{V_LANE}
          {lp}:
          buffer_load_dword v2, v3, {srd(S_DB)}, 0 offen sc1
          s_waitcnt vmcnt(0)
          s_mov_b32 s68, 0
          s_mov_b32 s65, 0''')
    for y in range(16):
        A(f'v_readlane_b32 s69, v2, {y}\ns_add_u32 s68, s68, s69')
        if y < 2:
            A(f's_min_u32 s70, s69, 32\ns_sub_u32 s{66+y}, 32, s70\ns_sub_u32 s69, s69, s70')
        A(f's_cmp_lt_u32 {y}, s62\ns_cselect_b32 s69, s69, 0\ns_add_u32 s65, s65, s69')
    A(f'''s_cmp_ge_u32 s68, 256
          s_cbranch_scc1 {lp}_d
          s_sleep 2
          s_sub_u32 {s_bud}, {s_bud}, 1
          s_cbranch_scc0 {lp}
          s_mov_b32 {s_bud}, 0
          {lp}_d:
          s_mov_b64 exec, -1
          s_add_u32 s65, s65, s63
          s_cmp_lt_u32 s62, 2
          s_cselect_b32 s69, 32, 0
          s_sub_u32 s65, s65, s69''')

def job_gemm_params(A):
    g = G
    A(f'''L_j1:
          s_lshl_b32 {g.s_flag}, s81, 2
          s_lshl_b32 s82, s80, 7
          s_add_u32 {g.s_flag}, {g.s_flag}, s82
          s_add_u32 {g.s_flag}, {g.s_flag}, {F_T1}
          s_mov_b32 {g.s_ob}, {KX}
          s_cmp_ge_u32 s81, 16
          s_cselect_b32 {g.s_ori}, 1, 0
          s_cselect_b32 s{S_WT}, s{P_WV}, s{P_WK}
          s_cselect_b32 s{S_WT+1}, s{P_WV+1}, s{P_WK+1}
          s_cselect_b32 {g.s_ob}, {VX}, {g.s_ob}
          s_and_b32 s81, s81, 15
          s_branch L_jB
          L_j2:
          s_lshl_b32 {g.s_flag}, s81, 2
          s_lshl_b32 s82, s80, 6
          s_add_u32 {g.s_flag}, {g.s_flag}, s82
          s_add_u32 {g.s_flag}, {g.s_flag}, {F_T2}
          s_mov_b32 {g.s_ori}, 0
          s_mov_b32 s{S_WT}, s{P_WQ}
          s_mov_b32 s{S_WT+1}, s{P_WQ+1}
          s_mov_b32 {g.s_ob}, {QX}
          L_jB:
          s_mov_b32 s{S_WT+2}, {640*8192}
          s_mov_b32 s{S_WT+3}, 0x20000''')
    mk_srd(A, S_XS, P_BX, 2048 * 1280)
    A(f'''s_mov_b32 {g.s_ld}, 8192
          s_mov_b32 {g.s_atype}, 64
          s_lshl_b32 {g.s_wo}, s81, 9
          s_mov_b32 {g.s_epi}, 0
          s_mov_b32 {g.s_stm}, {32*8192}
          s_mov_b32 {g.s_stn}, 2048
          s_and_b32 s82, {s_wave}, 1
          s_lshl_b32 s82, s82, 2
          s_lshl_b32 s83, s80, 3
          s_add_u32 s82, s82, s83
          s_lshl_b32 s82, s82, 5
          s_lshr_b32 s83, {s_wave}, 1
          s_add_u32 s82, s82, s83
          s_lshl_b32 s83, s81, 1
          s_add_u32 s82, s82, s83
          s_lshl_b32 s82, s82, 13
          s_add_u32 {g.s_ob}, {g.s_ob}, s82
          s_branch L_gemm
          L_j3:
          s_lshl_b32 {g.s_flag}, s81, 7
          s_add_u32 {g.s_flag}, {g.s_flag}, {F_C3}''')
    mk_srd(A, S_WT, P_AWQKV, 640 * 3840)
    mk_srd(A, S_XS, P_AX, 2048 * 1280)
    A(f'''s_mov_b32 {g.s_ld}, 3840
          s_mov_b32 {g.s_atype}, 40
          s_mul_i32 {g.s_wo}, s81, 320
          s_lshr_b32 s82, s81, 2
          s_add_u32 {g.s_epi}, s82, 1
          s_mov_b32 {g.s_stm}, 1536
          s_mov_b32 {g.s_ob}, {KA}
          s_cmp_eq_u32 s82, 2
          s_cselect_b32 {g.s_ori}, 1, 0
          s_cselect_b32 {g.s_stm}, 2048, {g.s_stm}
          s_cselect_b32 {g.s_ob}, {VA}, {g.s_ob}
          s_cmp_eq_u32 s82, 0
          s_cselect_b32 {g.s_ob}, {QA}, {g.s_ob}
          s_lshl_b32 {g.s_stn}, {g.s_stm}, 6
          s_and_b32 s81, s81, 3
          s_lshl_b32 s81, s81, 3
          s_lshr_b32 s83, {s_wave}, 1
          s_lshl_b32 s83, s83, 2
          s_add_u32 s81, s81, s83
          s_lshl_b32 s81, s81, 6
          s_and_b32 s82, {s_wave}, 1
          s_lshl_b32 s82, s82, 2
          s_lshl_b32 s83, s80, 3
          s_add_u32 s82, s82, s83
          s_add_u32 s81, s81, s82
          s_mul_i32 s81, s81, {g.s_stm}
          s_add_u32 {g.s_ob}, {g.s_ob}, s81
          L_gemm:
          s_mul_i32 {g.s_xo}, s80, {256*1280}''')
    G.gemm_setup(A)
    A(f's_cmp_lg_u32 {g.s_ori}, 0\ns_cbranch_scc1 L_gemm_o1')
    G.gemm_main(A, 0)
    A(f'''s_cmp_eq_u32 {g.s_epi}, 1
          s_cbranch_scc1 L_epi_aq
          s_cmp_eq_u32 {g.s_epi}, 2
          s_cbranch_scc1 L_epi_ak
          s_branch L_epi_b
          L_gemm_o1:''')
    G.gemm_main(A, 1)
    A(f's_cmp_eq_u32 {g.s_epi}, 3\ns_cbranch_scc1 L_epi_av\nL_epi_b:')
    G.gemm_epi(A, 'B'); A('s_branch L_gemm_end\nL_epi_aq:')
    G.gemm_epi(A, 'AQ'); A('s_branch L_gemm_end\nL_epi_ak:')
    G.gemm_epi(A, 'AK'); A('s_branch L_gemm_end\nL_epi_av:')
    G.gemm_epi(A, 'AV'); A('L_gemm_end:')
    stamp(A, 11)
    signal_add(A, g.s_flag)
    A('s_branch L_next')

def bulk_dispatch(A):
    A(f'''s_mov_b32 {s_rnd}, -1
          L_next:
          s_add_u32 {s_rnd}, {s_rnd}, 1''')
    if util.DEV['stamp']:
        for r in range(8):
            A(f's_cmp_lg_u32 {s_rnd}, {r}\ns_cbranch_scc1 L_st{r}')
            stamp(A, 1 + r)
            A(f'L_st{r}:')
    A(f'''s_cmp_gt_u32 {s_rnd}, {LASTR}
          s_cbranch_scc1 L_exit
          s_lshr_b32 s84, {s_i}, 4
          s_and_b32 s85, {s_i}, 15
          s_cmp_eq_u32 {s_rnd}, 0
          s_cbranch_scc0 L_r1
          s_and_b32 s80, {s_j}, 6
          s_add_u32 s80, s80, s84
          s_and_b32 s81, {s_j}, 1
          s_lshl_b32 s81, s81, 4
          s_add_u32 s81, s81, s85
          s_branch L_j1
          L_r1:
          s_cmp_eq_u32 {s_rnd}, 1
          s_cbranch_scc0 L_r2
          s_cmp_ge_u32 {s_j}, 3
          s_cbranch_scc1 L_r1b
          s_lshr_b32 s80, {s_i}, 2
          s_and_b32 s81, {s_i}, 3
          s_lshl_b32 s82, {s_j}, 2
          s_add_u32 s81, s81, s82
          s_branch L_j3
          L_r1b:
          s_cmp_eq_u32 {s_j}, 5
          s_cbranch_scc1 L_r1c
          s_add_u32 s80, s84, 6
          s_sub_u32 s81, {s_j}, 3
          s_lshl_b32 s81, s81, 4
          s_add_u32 s81, s81, s85
          s_branch L_j1
          L_r1c:
          s_mov_b32 s80, s84
          s_mov_b32 s81, s85
          s_branch L_j2
          L_r2:
          s_cmp_eq_u32 {s_rnd}, 2
          s_cbranch_scc0 L_r3
          s_cmp_lt_u32 {s_j}, 3
          s_cbranch_scc1 L_r2b
          s_sub_u32 s80, {s_j}, 2
          s_lshl_b32 s80, s80, 1
          s_add_u32 s80, s80, s84
          s_mov_b32 s81, s85
          s_branch L_j2
          L_r2b:
          s_lshl_b32 s80, {s_j}, 2
          s_branch L_j4
          L_r3:
          s_cmp_eq_u32 {s_rnd}, 3
          s_cbranch_scc0 L_r4
          s_cmp_eq_u32 {s_j}, 5
          s_cbranch_scc1 L_prep
          s_lshl_b32 s80, {s_j}, 2
          s_add_u32 s80, s80, 12
          s_branch L_j4
          L_r4:
          s_cmp_eq_u32 {s_rnd}, 4
          s_cbranch_scc1 L_j5
          s_cmp_eq_u32 {s_rnd}, 5
          s_cbranch_scc1 L_j6
          s_cmp_eq_u32 {s_rnd}, 6
          s_cbranch_scc1 L_j7
          s_branch L_exit''')

startup(A)
bulk_dispatch(A)
job_gemm_params(A)
try:
    import bulk_rest as R
    R.emit(A, OPT)
except ImportError:
    A('L_j4:\nL_prep:\nL_j5:\nL_j6:\nL_j7:\ns_branch L_next')
A('L_chain:')
if OPT.get('clktest'):
    A(f'''s_cmp_lg_u32 {s_wave}, 0
          s_cbranch_scc1 L_exit
          s_lshl_b32 s70, {s_wg}, 9
          s_add_u32 s70, s70, {DBGT+64}
          s_mov_b32 s71, 24
          v_mov_b32 v0, 0
          s_mov_b64 exec, 1
          L_ck:
          s_memtime s[72:73]
          s_memrealtime s[74:75]
          s_waitcnt lgkmcnt(0)
          v_mov_b32 v4, s72
          v_mov_b32 v5, s73
          v_mov_b32 v6, s74
          v_mov_b32 v7, s75
          buffer_store_dwordx4 v[4:7], v0, {srd(S_WS)}, s70 offen
          s_add_u32 s70, s70, 16
          s_mov_b32 s76, 1500
          L_ck2:
          v_add_u32 v8, v8, v8
          s_sub_u32 s76, s76, 1
          s_cbranch_scc0 L_ck2
          s_sub_u32 s71, s71, 1
          s_cbranch_scc0 L_ck''')
if not NOCHAIN:
    import chain as C
    C.emit(A, OPT, count_all)
A('L_exit:\ns_endpgm')

hdr = open('cdna_kernels/' + NAME + '.s.ref').read().split('\n')
head = [l for l in hdr if l.startswith(';') and '@launch' not in l and not l.startswith('; Override') and not l.startswith('; grid=')]
body = A.finish()
out = '\n'.join(head) + '\n; @launch grid=(256,1,1) block=(256,1,1) lds=163840\n'
out += f'''.amdgcn_target "amdgcn-amd-amdhsa--gfx950"
.text
.globl {KL}
.p2align 8
.type {KL},@function
{KL}:
''' + body + f'''.section .rodata,"a"
.p2align 6
.amdhsa_kernel {KL}
  .amdhsa_next_free_vgpr 512
  .amdhsa_next_free_sgpr 102
  .amdhsa_accum_offset 256
  .amdhsa_group_segment_fixed_size 0
  .amdhsa_kernarg_size 104
  .amdhsa_user_sgpr_count 2
  .amdhsa_user_sgpr_kernarg_segment_ptr 1
  .amdhsa_system_sgpr_workgroup_id_x 1
.end_amdhsa_kernel
'''
open(sys.argv[1], 'w').write(out)
print('lines', out.count('\n'), 'bytes', len(out), 'pads', A.npad)
```

```python
import re

REG_RE = re.compile(r'^(v|a|s)(\d+)$')
RNG_RE = re.compile(r'^(v|a|s)\[(\d+):(\d+)\]$')

def regs_of(tok):
    tok = tok.strip()
    neg = tok.startswith('-')
    if neg: tok = tok[1:]
    if tok.startswith('|') and tok.endswith('|'): tok = tok[1:-1]
    m = REG_RE.match(tok)
    if m: return {(m.group(1), int(m.group(2)))}
    m = RNG_RE.match(tok)
    if m: return {(m.group(1), i) for i in range(int(m.group(2)), int(m.group(3)) + 1)}
    if tok == 'vcc': return {('s', 'vcc_lo'), ('s', 'vcc_hi')}
    if tok in ('vcc_lo', 'vcc_hi'): return {('s', tok)}
    if tok == 'exec': return {('s', 'exec_lo'), ('s', 'exec_hi')}
    if tok in ('exec_lo', 'exec_hi'): return {('s', tok)}
    if tok == 'm0': return {('s', 'm0')}
    return set()

TRANS = ('v_exp_f32', 'v_log_f32', 'v_rcp_f32', 'v_rsq_f32', 'v_sqrt_f32', 'v_sin_f32', 'v_cos_f32', 'v_rcp_iflag_f32')

def mfma_passes(op):
    if '32x32' in op: return 8
    if '16x16' in op: return 4
    if '4x4' in op: return 2
    raise ValueError(op)

class Ins:
    __slots__ = ('text', 'op', 'ops', 'kind', 'wr', 'rd', 'mods', 'A', 'B', 'C', 'D', 'passes', 'label', 'target', 'nops', 'data', 'dpp', 'islds')
    def __init__(self, text):
        self.text = text
        self.label = None; self.target = None
        self.wr = set(); self.rd = set(); self.kind = 'other'
        self.A = self.B = self.C = self.D = None; self.passes = 0; self.nops = 0
        self.data = set(); self.dpp = False; self.islds = False
        t = text.split(';')[0].strip()
        if t.endswith(':'):
            self.label = t[:-1]; self.kind = 'label'; self.op = ''; self.mods = []; return
        if not t or t.startswith('.'):
            self.kind = 'pseudo'; self.op = ''; self.mods = []; return
        parts = t.split(None, 1)
        op = parts[0]; self.op = op
        rest = parts[1] if len(parts) > 1 else ''
        toks = []; depth = 0; cur = ''
        for ch in rest:
            if ch in '[(': depth += 1
            if ch in '])': depth -= 1
            if ch == ',' and depth == 0: toks.append(cur.strip()); cur = ''
            else: cur += ch
        if cur.strip(): toks.append(cur.strip())
        mods = []
        if toks:
            sp = toks[-1].split()
            toks[-1] = sp[0]; mods = sp[1:]
        self.ops = toks; self.mods = mods
        R = [regs_of(x) for x in toks]
        base = op
        for suf in ('_e32', '_e64', '_dpp', '_sdwa'):
            if base.endswith(suf): base = base[:-len(suf)]
        if op.startswith('v_mfma') or op.startswith('v_smfmac'):
            self.kind = 'mfma'; self.passes = mfma_passes(op)
            self.D = R[0]; self.A = R[1]; self.B = R[2]
            if op.startswith('v_smfmac'):
                self.C = R[0]; self.B = R[2] | R[3]
            else:
                self.C = R[3]
            self.wr = set(self.D); self.rd = self.A | self.B | self.C
        elif op.startswith('v_'):
            self.kind = 'valu'
            self.dpp = any(m.startswith(('row_', 'quad_perm', 'wave_', 'bank_mask')) for m in mods) or op.endswith('_dpp')
            if 'permlane' in op and 'swap' in op:
                self.wr = R[0] | R[1]; self.rd = R[0] | R[1]
            elif base.startswith('v_cmpx'):
                self.wr = regs_of('exec') | R[0]; self.rd = set().union(*R[1:])
            elif base in ('v_add_co_u32', 'v_sub_co_u32', 'v_addc_co_u32', 'v_subb_co_u32', 'v_subrev_co_u32'):
                self.wr = R[0] | R[1]; self.rd = set().union(*R[2:])
            elif base == 'v_nop':
                pass
            else:
                self.wr = set(R[0]); self.rd = set().union(*R[1:]) if len(R) > 1 else set()
                if base in ('v_fmac_f32', 'v_mac_f32', 'v_writelane_b32', 'v_pk_fmac_f16', 'v_dot2c_f32_bf16') or self.dpp:
                    self.rd |= R[0]
        elif op.startswith('ds_'):
            self.kind = 'ds'
            if op.startswith('ds_read') or op.startswith('ds_bpermute') or op.startswith('ds_permute') or op.startswith('ds_swizzle'):
                self.wr = set(R[0]); self.rd = set().union(*R[1:])
            else:
                self.rd = set().union(*R)
        elif op.startswith('buffer_') or op.startswith('global_'):
            self.kind = 'vmem'
            self.islds = ('lds' in mods) or ('_lds_' in op)
            if op in ('buffer_inv', 'buffer_wbl2'):
                pass
            elif self.islds:
                self.rd = set().union(*R) | {('s', 'm0')}
            elif '_load' in op:
                self.wr = set(R[0]); self.rd = set().union(*R[1:])
            elif '_atomic' in op:
                self.rd = set().union(*R)
                if 'sc0' in mods: self.wr = set(R[0])
            else:
                self.rd = set().union(*R)
                if op.startswith('buffer_'): d = R[0]
                else: d = R[1]
                if 'x3' in op or 'x4' in op: self.data = set(d)
        elif op.startswith('s_'):
            self.kind = 'salu'
            if op == 's_nop':
                self.nops = int(toks[0], 0) + 1
            elif op.startswith('s_cbranch') or op == 's_branch':
                self.target = toks[0]; self.kind = 'branch'
            elif op.startswith('s_cmp') or op in ('s_waitcnt', 's_barrier', 's_sleep', 's_setprio', 's_endpgm', 's_setreg_b32', 's_bitcmp1_b32', 's_bitcmp0_b32'):
                self.rd = set().union(*R) if R else set()
            else:
                self.wr = set(R[0]) if R else set()
                self.rd = set().union(*R[1:]) if len(R) > 1 else set()
                if 'saveexec' in op: self.wr |= regs_of('exec')

    @property
    def istrans(self):
        b = self.op
        for suf in ('_e32', '_e64'):
            if b.endswith(suf): b = b[:-4]
        return b in TRANS


XDL_OVL = {2: 4, 4: 6, 8: 10, 16: 18}
XDL_AB = {2: 5, 4: 8, 8: 12, 16: 20}
XDL_WAR = {2: 1, 4: 3, 8: 7, 16: 15}

def need(prod, cons):
    n = 0
    pk, ck = prod.kind, cons.kind
    vw = {r for r in prod.wr if r[0] in 'va'}
    sw = {r for r in prod.wr if r[0] == 's'}
    if pk == 'valu':
        if ck == 'mfma' and vw & cons.rd: n = max(n, 2)
        if ck == 'valu':
            if prod.istrans and not cons.istrans and vw & cons.rd: n = max(n, 1)
            if prod.istrans and cons.istrans and vw & cons.rd: n = max(n, 1)
            if 'permlane' in cons.op and vw & cons.rd: n = max(n, 2)
            if cons.dpp and vw & cons.rd: n = max(n, 2)
            if ('readlane' in cons.op or 'readfirstlane' in cons.op) and vw & cons.rd: n = max(n, 1)
            if sw & cons.rd:
                n = max(n, 4 if ('readlane' in cons.op or 'writelane' in cons.op) else 2)
            if any(m.startswith('op_sel') or 'sdwa' in prod.op or m.startswith('dst_sel') for m in prod.mods) and vw & (cons.rd | cons.wr): n = max(n, 1)
            if sw & regs_of('exec'):
                if cons.dpp: n = max(n, 5)
                if 'permlane' in cons.op or 'lane' in cons.op: n = max(n, 4)
        if ck == 'mfma' and sw & regs_of('exec'): n = max(n, 4)
        if ck == 'vmem' and sw & cons.rd: n = max(n, 5)
        if ck in ('branch',) and ('vccz' in cons.op or 'vccnz' in cons.op) and sw & regs_of('vcc'): n = max(n, 1)
    if pk == 'mfma':
        p = prod.passes
        if ck == 'mfma':
            if cons.C and (prod.D & cons.C):
                if prod.D == cons.C and prod.op == cons.op: n = max(n, 2 if p == 2 else 0)
                else: n = max(n, XDL_OVL[p])
            if prod.D & (cons.A | cons.B): n = max(n, XDL_AB[p])
            if (prod.D & cons.D) and not (cons.C and prod.D == cons.C): n = max(n, XDL_OVL[p])
        elif ck in ('valu', 'vmem', 'ds'):
            if prod.D & (cons.rd | cons.wr): n = max(n, XDL_AB[p])
            if ck == 'valu' and prod.C and (prod.C & cons.wr): n = max(n, XDL_WAR[p])
            if ck in ('vmem', 'ds') and prod.C and (prod.C & cons.wr): n = max(n, XDL_WAR[p])
    if pk == 'salu':
        if ('s', 'm0') in sw and cons.islds: n = max(n, 1)
    if pk == 'vmem' and prod.data:
        if prod.data & cons.wr: n = max(n, 2 if ck in ('valu', 'mfma') else 1)
    return n

MAXD = 20
PIPE_AWARE = True

class Asm:
    def __init__(self):
        self.L = []
        self.uid = 0
    def __call__(self, s):
        for line in s.split('\n'):
            line = line.strip()
            if line: self.L.append(line)
    def lab(self, name):
        self.uid += 1
        return f'{name}_{self.uid}'
    def finish(self):
        ins = [Ins(t) for t in self.L]
        pad = [0] * len(ins)
        labels = {x.label: i for i, x in enumerate(ins) if x.label}
        incoming = {}
        def key(st): return tuple(sorted((id(p), a, c) for p, a, c in st))
        for it in range(12):
            changed = False
            st = []
            newinc = {}
            for i, x in enumerate(ins):
                if x.kind == 'label':
                    d = {}
                    for p, a, c in st + incoming.get(x.label, []):
                        if id(p) not in d: d[id(p)] = (p, a, c)
                        else: d[id(p)] = (p, min(a, d[id(p)][1]), min(c, d[id(p)][2]))
                    st = list(d.values())
                    continue
                if x.kind == 'pseudo': continue
                if x.kind == 'mfma' and PIPE_AWARE:
                    st = [(p, max(a, c - 1), c) for p, a, c in st]
                req = 0
                for p, a, c in st:
                    r = need(p, x) - a
                    if r > req: req = r
                if req > pad[i]:
                    pad[i] = req; changed = True
                adv = pad[i] + (x.nops if x.nops else 1)
                if x.kind == 'mfma':
                    st2 = [(p, a + adv, (max(a + adv, c) + x.passes) if p.kind == 'mfma' else 0) for p, a, c in st if a + adv < MAXD]
                else:
                    st2 = [(p, a + adv, c) for p, a, c in st if a + adv < MAXD]
                if x.kind in ('valu', 'mfma', 'vmem') or (x.kind == 'salu' and ('s', 'm0') in x.wr):
                    st2.append((x, 0, x.passes if x.kind == 'mfma' else 0))
                st = st2
                if x.kind == 'branch':
                    newinc.setdefault(x.target, []).extend(st)
                    if x.op == 's_branch': st = []
                if x.op == 's_endpgm': st = []
                if x.op in ('s_setpc_b64', 's_swappc_b64'):
                    raise ValueError('indirect jumps unsupported')
            k1 = {k: key(v) for k, v in incoming.items()}
            k2 = {k: key(v) for k, v in newinc.items()}
            incoming = newinc
            if not changed and k1 == k2: break
        out = []
        self.npad = 0
        for i, x in enumerate(ins):
            n = pad[i]
            while n > 0:
                k = min(n, 16)
                out.append(f'  s_nop {k-1}'); n -= k; self.npad += 1
            out.append(x.text if x.kind == 'label' else '  ' + x.text)
        return '\n'.join(out) + '\n'
```

```python
from common import *
from util import *

NINF = '0xff800000'

def j4(A):
    QF = [8, 16]; KV = 32; S = [96, 112]; P = [128, 136]; O = [144, 160]
    NM = [24, 25]; THR = [26, 27]; LO = [28, 29]; T = 176
    VA16 = 4; VA8 = 5
    s_h = 's80'; s_qb = 's81'; s_kb = 's82'; s_vb = 's83'; s_t = 's84'; s_k = 's85'; s_v = 's86'; s_c = 's87'; s_T = 's88'
    A(f'''L_j4:
          s_lshr_b32 s82, {s_i}, 3
          s_add_u32 {s_h}, {s_h}, s82
          s_and_b32 {s_qb}, {s_i}, 7
          s_lshr_b32 s82, {s_h}, 3
          s_lshl_b32 s82, s82, 7
          s_add_u32 s82, s82, {F_C3}''')
    wait_words(A, 's82', 3, 512, 8)
    A(f'''v_lshlrev_b32 v{VA16}, 4, v{V_LANE}
          v_lshlrev_b32 v{VA8}, 3, v{V_LANE}
          s_mul_i32 {s_kb}, {s_h}, {64*1536}
          s_lshl_b32 {s_vb}, {s_h}, 17
          s_lshl_b32 {s_T}, {s_qb}, 3
          s_lshl_b32 s89, {s_wave}, 1
          s_add_u32 {s_T}, {s_T}, s89
          s_mul_i32 s89, {s_T}, 1536
          s_add_u32 s89, s89, {s_kb}
          s_add_u32 s89, s89, {QA}
          s_add_u32 {s_kb}, {s_kb}, {KA}
          s_add_u32 {s_vb}, {s_vb}, {VA}
          buffer_load_dwordx4 {vr(QF[0],4)}, v{VA16}, {srd(S_WS)}, s89 offen
          buffer_load_dwordx2 {vr(QF[0]+4,2)}, v{VA8}, {srd(S_WS)}, s89 offen offset:1024
          buffer_load_dwordx4 {vr(QF[1],4)}, v{VA16}, {srd(S_WS)}, s89 offen offset:1536
          buffer_load_dwordx2 {vr(QF[1]+4,2)}, v{VA8}, {srd(S_WS)}, s89 offen offset:2560''')
    for r in range(KV, KV + 64): A(f'v_mov_b32 v{r}, 0')
    for x in range(2):
        A(f'v_mov_b32 v{QF[x]+6}, 0\nv_mov_b32 v{QF[x]+7}, 0\nv_mov_b32 v{NM[x]}, 0\nv_mov_b32 v{THR[x]}, {NINF}\nv_mov_b32 v{LO[x]}, {NINF}')
        for r in range(16): A(f'v_mov_b32 v{O[x]+r}, 0')
    for r in range(16): A(f'v_mov_b32 v{S[1]+r}, {NINF}')
    def loads(st):
        b = KV + 16 * st
        A(f'''s_min_u32 s89, {s_t}, 63
              s_mul_i32 {s_k}, s89, 1536
              s_add_u32 {s_k}, {s_k}, {s_kb}
              s_lshl_b32 {s_v}, s89, 11
              s_add_u32 {s_v}, {s_v}, {s_vb}
              s_add_u32 {s_t}, {s_t}, 1
              buffer_load_dwordx4 {vr(b,4)}, v{VA16}, {srd(S_WS)}, {s_k} offen
              buffer_load_dwordx2 {vr(b+4,2)}, v{VA8}, {srd(S_WS)}, {s_k} offen offset:1024
              buffer_load_dwordx4 {vr(b+8,4)}, v{VA16}, {srd(S_WS)}, {s_v} offen
              buffer_load_dwordx4 {vr(b+12,4)}, v{VA16}, {srd(S_WS)}, {s_v} offen offset:1024''')
    def smm(x, st):
        b = KV + 16 * st
        A(f'''v_mfma_f32_32x32x16_bf16 {vr(S[x],16)}, {vr(b,4)}, {vr(QF[x],4)}, 0
              v_mfma_f32_32x32x16_bf16 {vr(S[x],16)}, {vr(b+4,4)}, {vr(QF[x]+4,4)}, {vr(S[x],16)}''')
    def pv(x, st):
        b = KV + 16 * st
        A(f'''v_mfma_f32_32x32x16_bf16 {vr(O[x],16)}, {vr(b+8,4)}, {vr(P[x],4)}, {vr(O[x],16)}
              v_mfma_f32_32x32x16_bf16 {vr(O[x],16)}, {vr(b+12,4)}, {vr(P[x]+4,4)}, {vr(O[x],16)}''')
    rare = []
    def soft(x):
        s = S[x]
        A(f'''v_max3_f32 v{T}, v{s}, v{s+1}, v{s+2}
              v_max3_f32 v{T+1}, v{s+3}, v{s+4}, v{s+5}
              v_max3_f32 v{T}, v{T}, v{s+6}, v{s+7}
              v_max3_f32 v{T+1}, v{T+1}, v{s+8}, v{s+9}
              v_max3_f32 v{T}, v{T}, v{s+10}, v{s+11}
              v_max3_f32 v{T+1}, v{T+1}, v{s+12}, v{s+13}
              v_max3_f32 v{T}, v{T}, v{s+14}, v{s+15}
              v_max_f32 v{T}, v{T}, v{T+1}
              v_cmp_gt_f32 vcc, v{T}, v{THR[x]}''')
        lr = A.lab('rr'); lb = A.lab('rb')
        A(f's_cbranch_vccnz {lr}\n{lb}:')
        rare.append((lr, lb, x))
        for r in range(16):
            A(f'v_exp_f32 v{s+r}, v{s+r}')
            if r % 2 == 1 and r >= 3: A(f'v_cvt_pk_bf16_f32 v{P[x]+(r-3)//2}, v{s+r-3}, v{s+r-2}')
        A(f'v_cvt_pk_bf16_f32 v{P[x]+7}, v{s+14}, v{s+15}')
    A(f's_mov_b32 {s_t}, 0')
    for st in range(3): loads(st)
    A(f's_mov_b32 {s_c}, 16\nL_j4_loop:')
    for st in range(4):
        A('s_waitcnt vmcnt(8)')
        smm(0, st)
        soft(1)
        pv(1, (st + 3) % 4)
        smm(1, st)
        loads((st + 3) % 4)
        soft(0)
        pv(0, st)
    A(f's_sub_u32 {s_c}, {s_c}, 1\ns_cmp_lg_u32 {s_c}, 0\ns_cbranch_scc1 L_j4_loop')
    soft(1)
    pv(1, 3)
    A(f'''s_mul_i32 s89, {s_T}, 40
          s_add_u32 s90, s89, {s_h}
          s_lshl_b32 s90, s90, 10
          s_add_u32 s90, s90, {OA}
          s_lshr_b32 s91, {s_h}, 2
          s_add_u32 s91, s91, s89
          s_add_u32 s91, s91, 32
          s_lshl_b32 s91, s91, 10
          s_add_u32 s91, s91, {OA}
          s_and_b32 s89, {s_h}, 2
          s_lshl_b32 s89, s89, 8
          s_add_u32 s91, s91, s89
          s_and_b32 s89, {s_h}, 1
          s_lshl_b32 s89, s89, 3
          s_add_u32 s91, s91, s89''')
    for x in range(2):
        o = O[x]
        A(f'''v_mov_b32 v{T}, v{o+8}
              v_mov_b32 v{T+1}, v{o+8}
              v_permlane32_swap_b32 v{T}, v{T+1}
              v_rcp_f32 v{T+1}, v{T+1}''')
        for r in range(12): A(f'v_mul_f32 v{o+r}, v{o+r}, v{T+1}')
        for r in range(6): A(f'v_cvt_pk_bf16_f32 v{P[x]+r}, v{o+2*r}, v{o+2*r+1}')
        A(f'''buffer_store_dwordx4 {vr(P[x],4)}, v{VA16}, {srd(S_WS)}, s90 offen sc1
              s_mov_b64 exec, 0xffffffff
              buffer_store_dwordx2 {vr(P[x]+4,2)}, v{VA16}, {srd(S_WS)}, s91 offen sc1
              s_mov_b64 exec, -1
              s_add_u32 s90, s90, {40*1024}
              s_add_u32 s91, s91, {40*1024}''')
    A(f's_lshl_b32 s89, {s_qb}, 7\ns_add_u32 s89, s89, {F_C4}')
    signal_add(A, 's89')
    A('s_branch L_next')
    for lr, lb, x in rare:
        s = S[x]; o = O[x]
        A(f'''{lr}:
              v_mov_b32 v{T+1}, v{T}
              v_permlane32_swap_b32 v{T}, v{T+1}
              v_max3_f32 v{T}, v{T}, v{T+1}, v{LO[x]}
              v_sub_f32 v{T+1}, v{NM[x]}, v{T}
              v_cvt_pk_bf16_f32 v{T+2}, v{T+1}, v{T+1}
              v_lshlrev_b32 v{T+2}, 16, v{T+2}
              v_sub_f32 v{T+3}, v{T+1}, v{T+2}
              v_cvt_pk_bf16_f32 v{T+3}, v{T+1}, v{T+3}
              v_and_b32 v{T+4}, 0xffff0000, v{T+3}
              v_add_f32 v{T+2}, v{T+2}, v{T+4}
              v_sub_f32 v{T+4}, v{T+2}, v{NM[x]}
              v_mov_b32 v{NM[x]}, v{T+2}
              v_min_f32 v{T+5}, 0, v{T+4}
              v_exp_f32 v{T+5}, v{T+5}
              s_mov_b32 exec_lo, 0
              v_mov_b32 v{QF[x]+4}, v{T+3}
              s_mov_b32 exec_lo, -1
              v_mov_b32 v{THR[x]}, 0x41000000
              v_mov_b32 v{LO[x]}, 0''')
        for r in range(16): A(f'v_add_f32 v{s+r}, v{s+r}, v{T+4}')
        for r in range(12): A(f'v_mul_f32 v{o+r}, v{o+r}, v{T+5}')
        A(f's_branch {lb}')

def prep(A):
    RH = 8; CO = 16; VO = 24; RA = 32; D = 40; VA16 = 4
    A(f'''L_prep:
          v_lshlrev_b32 v{VA16}, 4, v{V_LANE}
          s_mul_i32 s80, {s_wave}, 5120
          s_mov_b32 s81, 52429''')
    for n in range(5):
        A(f'''s_add_u32 s82, s80, {n*1024}
              v_add_u32 v2, s82, v{VA16}
              v_lshrrev_b32 v3, 8, v2
              v_mul_lo_u32 v3, v3, s81
              v_lshrrev_b32 v{RH+n}, 18, v3
              v_mul_u32_u24 v3, 1280, v{RH+n}
              v_sub_u32 v{CO+n}, v2, v3''')
    A(f'''v_lshrrev_b32 v2, 5, v{V_LANE}
          v_lshlrev_b32 v2, 2, v2
          v_bfe_u32 v3, v{V_LANE}, 2, 2
          v_add_u32 v2, v2, v3
          v_mul_u32_u24 v2, 1280, v2
          v_bfe_u32 v3, v{V_LANE}, 4, 1
          v_lshlrev_b32 v3, 5, v3
          v_add_u32 v2, v2, v3
          v_and_b32 v3, 3, v{V_LANE}
          v_lshlrev_b32 v3, 3, v3
          s_mul_i32 s82, {s_wave}, 320
          v_add3_u32 v{RA}, v2, v3, s82''')
    for batch in range(2):
        for e in range(5):
            bb = batch * 5 + e
            if bb == 0: mk_srd(A, S_WT, P_WO, 4096 * 1280)
            if bb == 8: mk_srd(A, S_WT, P_AWO, 640 * 1280)
            if bb in (0, 9):
                for n in range(5):
                    if bb == 0:
                        A(f'v_mul_u32_u24 v2, 1280, v{RH+n}\nv_add_u32 v{VO+n}, v2, v{CO+n}')
                    else:
                        A(f'''v_and_b32 v2, 3, v{RH+n}
                              v_bfe_u32 v3, v{RH+n}, 2, 1
                              v_mad_u32_u24 v2, v3, 40, v2
                              v_lshrrev_b32 v3, 3, v{RH+n}
                              v_mad_u32_u24 v2, v3, 20, v2
                              v_mul_u32_u24 v2, 1280, v2
                              v_add_u32 v{VO+n}, v2, v{CO+n}''')
            if bb < 8: A(f's_add_u32 s82, {s_i}, {32*bb}\ns_mul_i32 s82, s82, {16*1280}')
            elif bb == 8: A(f's_mul_i32 s82, {s_i}, {20*1280}')
            else: A(f's_and_b32 s82, {s_i}, 7\ns_mul_i32 s82, s82, {80*1280}\ns_add_u32 s82, s82, {16*1280}')
            for n in range(5):
                A(f's_add_u32 m0, s80, {e*20480 + n*1024}\nbuffer_load_dwordx4 v{VO+n}, {srd(S_WT)}, s82 offen lds')
        A('s_waitcnt vmcnt(0)\ns_barrier')
        for e in range(5):
            bb = batch * 5 + e
            if e == 3: A(f'v_add_u32 v{RA+1}, {3*20480}, v{RA}')
            for n in range(5):
                ra = RA if e < 3 else RA + 1; eo = (e if e < 3 else e - 3) * 20480
                A(f'''ds_read_b64_tr_b16 {vr(D+20*e+4*n,2)}, v{ra} offset:{eo + n*64}
                      ds_read_b64_tr_b16 {vr(D+20*e+4*n+2,2)}, v{ra} offset:{eo + n*64 + 8*1280}''')
        A('s_waitcnt lgkmcnt(0)\ns_barrier')
        for e in range(5):
            bb = batch * 5 + e
            if bb == 9: A(f's_cmp_ge_u32 {s_i}, 8\ns_cbranch_scc1 L_prep_e')
            for n in range(5):
                A(f'''s_mul_i32 s82, {s_wave}, 5
                      s_add_u32 s82, s82, {n}
                      s_lshr_b32 s83, s82, 2
                      s_mul_i32 s83, s83, 296
                      s_add_u32 s83, s83, {s_i}
                      s_add_u32 s83, s83, {32*bb}
                      s_lshl_b32 s83, s83, 2
                      s_and_b32 s82, s82, 3
                      s_add_u32 s83, s83, s82
                      s_lshl_b32 s83, s83, 10
                      s_add_u32 s83, s83, {WF}
                      buffer_store_dwordx4 {vr(D+20*e+4*n,4)}, v{VA16}, {srd(S_WS)}, s83 offen sc1''')
    A(f'L_prep_e:\ns_mov_b32 s82, {F_CP}')
    signal_add(A, 's82')
    A('s_branch L_next')

def fgemm(A):
    FR = 32; VA16 = 4
    def ld(e):
        b = FR + 24 * e
        A(f'''buffer_load_dwordx4 {vr(b,4)}, v{VA16}, {srd(S_WS)}, s80 offen
              buffer_load_dwordx4 {vr(b+4,4)}, v{VA16}, {srd(S_WS)}, s81 offen
              s_add_u32 s80, s80, 1024
              s_add_u32 s81, s81, 1024''')
        for tn in range(4):
            A(f'buffer_load_dwordx4 {vr(b+8+4*tn,4)}, v{VA16}, {srd(S_WS)}, s82 offen offset:{tn*1024}')
        A('s_add_u32 s82, s82, 4096')
    def body(load):
        for e in range(8):
            b = FR + 24 * e
            A(f's_waitcnt vmcnt({42 if load else 42-6*e})')
            for tm in range(2):
                for tn in range(4):
                    acc = ar(16 * (4 * tm + tn), 16)
                    A(f'v_mfma_f32_32x32x16_bf16 {acc}, {vr(b+8+4*tn,4)}, {vr(b+4*tm,4)}, {acc}')
            if load: ld(e)
    A(f'L_fg:\nv_lshlrev_b32 v{VA16}, 4, v{V_LANE}')
    for e in range(8): ld(e)
    for k in range(128): A(f'v_accvgpr_write_b32 a{k}, 0')
    A('s_cmp_eq_u32 s83, 1\ns_cbranch_scc1 L_fg_last\nL_fg_loop:')
    body(True)
    A('s_sub_u32 s83, s83, 1\ns_cmp_lg_u32 s83, 1\ns_cbranch_scc1 L_fg_loop\nL_fg_last:')
    body(False)
    A(f's_lshl_b32 s85, {s_wave}, 15\nv_add_u32 v5, s85, v{VA16}')
    for t in range(8):
        for q in range(4):
            A(f'ds_write_b128 v5, {ar(16*t+4*q,4)} offset:{t*4096+q*1024}')
    A(f'''s_waitcnt lgkmcnt(0)
          s_barrier
          s_lshl_b32 s85, {s_wave}, 12
          v_add_u32 v5, s85, v{VA16}
          v_add_u32 v6, 0x10000, v5''')
    for tm in range(2):
        for w in range(4):
            for q in range(4):
                A(f'ds_read_b128 {vr(FR+64*tm+16*w+4*q,4)}, v{5 if w < 2 else 6} offset:{(w%2)*32768 + tm*16384 + q*1024}')
    A(f'''v_and_b32 v7, 31, v{V_LANE}
          v_mul_u32_u24 v7, 2560, v7
          v_lshrrev_b32 v8, 5, v{V_LANE}
          v_lshlrev_b32 v8, 4, v8
          v_add_u32 v7, v7, v8
          s_mul_i32 s85, {s_i}, {64*2560}
          s_add_u32 s85, s85, s84
          s_lshl_b32 s86, {s_wave}, 6
          s_add_u32 s85, s85, s86''')
    for tm in range(2):
        b = FR + 64 * tm
        A(f's_waitcnt lgkmcnt({15 if tm == 0 else 0})')
        if tm == 0: A('s_waitcnt lgkmcnt(0)')
        for r in range(16):
            A(f'v_add_f32 v{b+r}, v{b+r}, v{b+16+r}\nv_add_f32 v{b+32+r}, v{b+32+r}, v{b+48+r}')
        for r in range(16): A(f'v_add_f32 v{b+r}, v{b+r}, v{b+32+r}')
        for r in range(8): A(f'v_cvt_pk_bf16_f32 v{b+16+r}, v{b+2*r}, v{b+2*r+1}')
        for hh in range(2):
            A(f'v_permlane32_swap_b32 v{b+16+4*hh}, v{b+16+4*hh+2}\nv_permlane32_swap_b32 v{b+16+4*hh+1}, v{b+16+4*hh+3}')
        for hh in range(2):
            A(f'buffer_store_dwordx4 {vr(b+16+4*hh,4)}, v7, {srd(S_OUT)}, s85 offen offset:{32*hh}')
        A(f's_add_u32 s85, s85, {32*2560}')
    A('s_waitcnt lgkmcnt(0)\ns_barrier\ns_branch L_next')

def j5(A):
    A(f'''L_j5:
          s_cmp_eq_u32 {s_j}, 5
          s_cbranch_scc1 L_next
          s_mov_b32 s80, {F_CP}''')
    wait_words(A, 's80', 1, 4, 32, barrier=False)
    A(f's_lshr_b32 s80, {s_i}, 2\ns_lshl_b32 s80, s80, 7\ns_add_u32 s80, s80, {F_C4}')
    wait_words(A, 's80', 1, 4, 32)
    A(f'''s_lshl_b32 s85, {s_wave}, 3
          s_add_u32 s85, s85, 8
          s_cmp_eq_u32 {s_wave}, 0
          s_cselect_b32 s85, 0, s85
          s_cselect_b32 s83, 2, 1
          s_mul_i32 s80, {s_i}, 80
          s_add_u32 s80, s80, s85
          s_lshl_b32 s80, s80, 10
          s_add_u32 s80, s80, {OA}
          s_add_u32 s81, s80, {40*1024}
          s_mul_i32 s82, {s_j}, 296
          s_add_u32 s82, s82, s85
          s_add_u32 s82, s82, 256
          s_lshl_b32 s82, s82, 12
          s_add_u32 s82, s82, {WF}
          s_lshl_b32 s84, {s_j}, 8
          s_branch L_fg''')

def j7(A):
    A(f'''L_j7:
          s_cmp_eq_u32 {s_j}, 5
          s_cbranch_scc1 L_next
          s_lshl_b32 s80, {s_i}, 6
          s_add_u32 s80, s80, {F_C6}''')
    wait_words(A, 's80', 1, 4, 6)
    A(f'''s_lshl_b32 s85, {s_wave}, 6
          s_mov_b32 s83, 8
          s_lshl_b32 s80, {s_i}, 9
          s_add_u32 s80, s80, s85
          s_lshl_b32 s80, s80, 10
          s_add_u32 s80, s80, {OX}
          s_add_u32 s81, s80, {256*1024}
          s_mul_i32 s82, {s_j}, 296
          s_add_u32 s82, s82, s85
          s_lshl_b32 s82, s82, 12
          s_add_u32 s82, s82, {WF}
          s_lshl_b32 s84, {s_j}, 8
          s_add_u32 s84, s84, 1280
          s_branch L_fg''')

def j6(A, OPT):
    Q = 32; K = 64; V = 96; KMr = 128; VMr = 160; SX = 176; SM = 192; O = 32; PX = 208; PM = 216; T = 224
    VA16 = 4; VKM = 5; VVM = 6; VQ = 7
    s_p = 's80'; s_seg = 's81'; s_h = 's82'; s_b = 's83'
    A(f'''L_j6:
          v_lshlrev_b32 v{VA16}, 4, v{V_LANE}
          v_and_b32 v2, 7, v{V_LANE}
          v_lshrrev_b32 v3, 5, v{V_LANE}
          v_lshlrev_b32 v{VKM}, 3, v3
          v_add_u32 v{VKM}, v{VKM}, v2
          v_lshlrev_b32 v{VKM}, 4, v{VKM}
          v_and_b32 v2, 31, v{V_LANE}
          v_lshlrev_b32 v{VVM}, 4, v2
          v_lshlrev_b32 v{VQ}, 3, v3
          v_add_u32 v{VVM}, v{VVM}, v{VQ}
          v_lshlrev_b32 v3, 2, v3
          v_sub_u32 v{VQ}, v2, v3
          s_lshl_b32 {s_p}, {s_j}, 2
          s_add_u32 {s_p}, {s_p}, {s_wave}
          L_j6_loop:
          s_lshr_b32 {s_seg}, {s_p}, 5
          s_lshl_b32 s84, {s_i}, 1
          s_add_u32 {s_seg}, {s_seg}, s84
          s_and_b32 {s_h}, {s_p}, 31
          s_lshr_b32 s84, {s_seg}, 3
          s_lshl_b32 s85, s84, 7
          s_lshr_b32 s86, {s_h}, 1
          s_lshl_b32 s86, s86, 2
          s_add_u32 s85, s85, s86
          s_add_u32 s85, s85, {F_T1}''')
    wait_words(A, 's85', 2, 64, 1, barrier=False, allwaves=True)
    A(f's_lshl_b32 s85, s84, 6\ns_add_u32 s85, s85, s86\ns_add_u32 s85, s85, {F_T2}')
    wait_words(A, 's85', 1, 4, 1, barrier=False, allwaves=True)
    A(f'''s_lshl_b32 {s_b}, {s_seg}, 5
          s_add_u32 {s_b}, {s_b}, {s_h}
          s_lshl_b32 s84, {s_b}, 13''')
    for base, reg in ((QX, Q), (KX, K), (VX, V)):
        A(f's_add_u32 s85, s84, {base}\ns_add_u32 s86, s85, 4096')
        for u in range(8):
            A(f'buffer_load_dwordx4 {vr(reg+4*u,4)}, v{VA16}, {srd(S_WS)}, {"s85" if u < 4 else "s86"} offen offset:{(u%4)*1024}')
    for tn in range(4): A(f'v_mov_b32 v{VMr+4*tn+2}, 0\nv_mov_b32 v{VMr+4*tn+3}, 0')
    A(f'v_mov_b32 v{PM+2}, 0\nv_mov_b32 v{PM+3}, 0')
    if OPT.get('nochain', '0') != '1':
        A(f's_lshl_b32 s85, {s_h}, 8\ns_add_u32 s85, s85, {F_CH}\ns_add_u32 s86, {s_seg}, 1')
        wait_words(A, 's85', 2, 8192, 's86', barrier=False, allwaves=True, sleep=2)
    A(f's_lshl_b32 s84, {s_b}, 11\ns_add_u32 s85, s84, {KM}\ns_add_u32 s86, s84, {VM}')
    for u in range(8):
        A(f'buffer_load_dwordx4 {vr(KMr+4*u,4)}, v{VKM}, {srd(S_WS)}, s85 offen offset:{u*256}')
    for tn in range(4):
        A(f'buffer_load_dwordx2 {vr(VMr+4*tn,2)}, v{VVM}, {srd(S_WS)}, s86 offen offset:{tn*512}')
    A('s_waitcnt vmcnt(20)')
    for u in range(8):
        A(f'v_mfma_f32_32x32x16_bf16 {vr(SX,16)}, {vr(K+4*u,4)}, {vr(Q+4*u,4)}, {vr(SX,16) if u else 0}')
    A('s_waitcnt vmcnt(4)')
    for u in range(8):
        A(f'v_mfma_f32_32x32x16_bf16 {vr(SM,16)}, {vr(KMr+4*u,4)}, {vr(Q+4*u,4)}, {vr(SM,16) if u else 0}')
    A(f'v_mov_b32 v{T+2}, {NINF}')
    for r in range(16):
        A(f'v_cmp_le_i32 vcc, {8*(r//4) + r%4}, v{VQ}\nv_cndmask_b32 v{SX+r}, v{T+2}, v{SX+r}, vcc')
    A(f'v_max3_f32 v{T}, v{SX}, v{SX+1}, v{SX+2}')
    for r in range(3, 15, 2): A(f'v_max3_f32 v{T}, v{T}, v{SX+r}, v{SX+r+1}')
    A(f'''v_max3_f32 v{T}, v{T}, v{SX+15}, v{SM}
          v_max3_f32 v{T}, v{T}, v{SM+1}, v{SM+2}
          v_max_f32 v{T}, v{T}, v{SM+3}
          v_mov_b32 v{T+1}, v{T}
          v_permlane32_swap_b32 v{T}, v{T+1}
          v_max_f32 v{T}, v{T}, v{T+1}
          s_mov_b32 s84, {f2u(LOG2E * 128 ** -0.5)}
          v_mul_f32 v{T}, s84, v{T}''')
    regs = [SX + r for r in range(16)] + [SM + r for r in range(4)]
    for r in regs: A(f'v_fma_f32 v{r}, v{r}, s84, -v{T}')
    for r in regs: A(f'v_exp_f32 v{r}, v{r}')
    for r in range(8): A(f'v_cvt_pk_bf16_f32 v{PX+r}, v{SX+2*r}, v{SX+2*r+1}')
    for r in range(2): A(f'v_cvt_pk_bf16_f32 v{PM+r}, v{SM+2*r}, v{SM+2*r+1}')
    A('s_waitcnt vmcnt(0)')
    for tn in range(4):
        o = vr(O + 16 * tn, 16)
        A(f'''v_mfma_f32_32x32x16_bf16 {o}, {vr(V+8*tn,4)}, {vr(PX,4)}, 0
              v_mfma_f32_32x32x16_bf16 {o}, {vr(V+8*tn+4,4)}, {vr(PX+4,4)}, {o}
              v_mfma_f32_32x32x16_bf16 {o}, {vr(VMr+4*tn,4)}, {vr(PM,4)}, {o}''')
    A(f'v_add_f32 v{T}, v{regs[0]}, v{regs[1]}')
    for r in regs[2:]: A(f'v_add_f32 v{T}, v{T}, v{r}')
    A(f'''v_mov_b32 v{T+1}, v{T}
          v_permlane32_swap_b32 v{T}, v{T+1}
          v_add_f32 v{T}, v{T}, v{T+1}
          v_rcp_f32 v{T}, v{T}
          s_lshl_b32 s84, {s_b}, 13
          s_add_u32 s85, s84, {OX}
          s_add_u32 s86, s85, 4096''')
    for tn in range(4):
        o = O + 16 * tn
        for r in range(16): A(f'v_mul_f32 v{o+r}, v{o+r}, v{T}')
        for r in range(8): A(f'v_cvt_pk_bf16_f32 v{KMr+8*tn+r}, v{o+2*r}, v{o+2*r+1}')
        for u in range(2):
            A(f'buffer_store_dwordx4 {vr(KMr+8*tn+4*u,4)}, v{VA16}, {srd(S_WS)}, {"s85" if tn < 2 else "s86"} offen offset:{((2*tn+u)%4)*1024} sc1')
    A(f'''s_add_u32 {s_p}, {s_p}, 24
          s_cmp_lt_u32 {s_p}, 64
          s_cbranch_scc1 L_j6_loop
          s_lshl_b32 s80, {s_i}, 6
          s_add_u32 s80, s80, {F_C6}''')
    signal_add(A, 's80')
    A('s_branch L_next')

def emit(A, OPT):
    j4(A); prep(A); j5(A); j7(A); fgemm(A); j6(A, OPT)
```

```python
import sys
from common import *
from util import *
import util
import bulk_gemm as G
OPT = dict(a.split('=') for a in sys.argv[2:] if '=' in a)
util.DEV['stamp'] = OPT.get('stamp', '0') == '1'
if OPT.get('clk'): util.DEV['clk'] = 's_memtime'
NOCHAIN = OPT.get('nochain', '0') == '1'
LASTR = int(OPT.get('lastr', '99'))

A = Asm()
KL = NAME + '_kernel'

def startup(A):
    A(f'''s_cmp_ge_u32 s2, 256
          s_cbranch_scc1 L_exit
          s_mov_b32 {s_wg}, s2
          s_load_dwordx16 s[8:23], s[0:1], 0
          s_load_dwordx8 s[24:31], s[0:1], 64
          s_load_dwordx2 s[32:33], s[0:1], 96
          v_lshrrev_b32 v2, 6, v0
          v_and_b32 v{V_LANE}, 63, v0
          v_readfirstlane_b32 {s_wave}, v2
          s_mov_b32 {s_bud}, 200000
          s_waitcnt lgkmcnt(0)''')
    mk_srd(A, S_WS, P_WS, WS_BYTES)
    mk_srd(A, S_OUT, P_OUT, 2048 * 1280 * 2)
    mk_srd(A, S_DB, P_DBG, 256)
    stamp(A, 0)
    A(f'''v_mov_b32 v4, -1
          v_mov_b32 v5, -1
          v_mov_b32 v6, -1
          v_mov_b32 v7, -1
          v_mov_b32 v8, 0
          v_mov_b32 v9, 0
          v_mov_b32 v10, 0
          v_mov_b32 v11, 0
          s_lshl_b32 s62, {s_wave}, 10
          v_lshlrev_b32 v2, 4, v{V_LANE}
          v_add_u32 v2, s62, v2
          s_mul_i32 s62, {s_wg}, 15360
          s_add_u32 s62, s62, {SENT}
          s_add_u32 s63, s62, 4096
          buffer_store_dwordx4 v[4:7], v2, {srd(S_WS)}, s62 offen sc1
          buffer_store_dwordx4 v[4:7], v2, {srd(S_WS)}, s63 offen sc1
          s_add_u32 s62, s62, 8192
          s_add_u32 s63, s63, 8192
          buffer_store_dwordx4 v[4:7], v2, {srd(S_WS)}, s62 offen sc1
          v_cmp_gt_u32 vcc, 3072, v2
          s_and_saveexec_b64 s[64:65], vcc
          buffer_store_dwordx4 v[4:7], v2, {srd(S_WS)}, s63 offen sc1
          s_mov_b64 exec, s[64:65]
          v_cmp_gt_u32 vcc, 128, v2
          s_and_saveexec_b64 s[64:65], vcc
          s_lshl_b32 s62, {s_wg}, 7
          buffer_store_dwordx4 v[8:11], v2, {srd(S_WS)}, s62 offen sc1
          s_mov_b64 exec, s[64:65]
          s_waitcnt vmcnt(0)
          s_barrier
          s_cmp_lg_u32 {s_wave}, 0
          s_cbranch_scc1 L_role_bc
          s_getreg_b32 s62, hwreg(HW_REG_XCC_ID)
          s_and_b32 s62, s62, 15
          s_lshl_b32 s63, s62, 2
          s_mov_b64 exec, 1
          v_mov_b32 v2, 1
          v_mov_b32 v3, 0
          buffer_atomic_add v2, v3, {srd(S_DB)}, s63 offen sc0 sc1
          s_waitcnt vmcnt(0)
          v_readfirstlane_b32 s63, v2
          s_mov_b64 exec, -1
          s_cmp_ge_u32 s62, 2
          s_cbranch_scc1 L_role_wait
          s_cmp_ge_u32 s63, 32
          s_cbranch_scc1 L_role_wait
          s_lshl_b32 s64, s62, 5
          s_add_u32 s64, s64, s63
          s_branch L_role_put
          L_role_wait:''')
    count_all(A)
    A(f'''s_cmp_ge_u32 s65, s66
          s_cbranch_scc1 L_role_n0
          s_sub_u32 s64, 32, s66
          s_add_u32 s64, s64, s65
          s_branch L_role_put
          L_role_n0:
          s_sub_u32 s65, s65, s66
          s_cmp_ge_u32 s65, s67
          s_cbranch_scc1 L_role_n1
          s_sub_u32 s64, 64, s67
          s_add_u32 s64, s64, s65
          s_branch L_role_put
          L_role_n1:
          s_sub_u32 s65, s65, s67
          s_add_u32 s64, s65, 64
          L_role_put:
          v_mov_b32 v2, s64
          v_mov_b32 v3, 0
          ds_write_b32 v3, v2
          s_waitcnt lgkmcnt(0)
          L_role_bc:
          s_barrier
          v_mov_b32 v3, 0
          ds_read_b32 v2, v3
          s_waitcnt lgkmcnt(0)
          v_readfirstlane_b32 s64, v2
          s_barrier
          s_cmp_lt_u32 s64, 64
          s_cbranch_scc1 L_chain
          s_sub_u32 s64, s64, 64
          s_lshr_b32 {s_j}, s64, 5
          s_and_b32 {s_i}, s64, 31
          s_min_u32 {s_j}, {s_j}, 5''')

def count_all(A):
    lp = A.lab('cnt')
    A(f'''s_mov_b64 exec, 0xffff
          v_lshlrev_b32 v3, 2, v{V_LANE}
          {lp}:
          buffer_load_dword v2, v3, {srd(S_DB)}, 0 offen sc1
          s_waitcnt vmcnt(0)
          s_mov_b32 s68, 0
          s_mov_b32 s65, 0''')
    for y in range(16):
        A(f'v_readlane_b32 s69, v2, {y}\ns_add_u32 s68, s68, s69')
        if y < 2:
            A(f's_min_u32 s70, s69, 32\ns_sub_u32 s{66+y}, 32, s70\ns_sub_u32 s69, s69, s70')
        A(f's_cmp_lt_u32 {y}, s62\ns_cselect_b32 s69, s69, 0\ns_add_u32 s65, s65, s69')
    A(f'''s_cmp_ge_u32 s68, 256
          s_cbranch_scc1 {lp}_d
          s_sleep 2
          s_sub_u32 {s_bud}, {s_bud}, 1
          s_cbranch_scc0 {lp}
          s_mov_b32 {s_bud}, 0
          {lp}_d:
          s_mov_b64 exec, -1
          s_add_u32 s65, s65, s63
          s_cmp_lt_u32 s62, 2
          s_cselect_b32 s69, 32, 0
          s_sub_u32 s65, s65, s69''')

def job_gemm_params(A):
    g = G
    A(f'''L_j1:
          s_lshl_b32 {g.s_flag}, s81, 2
          s_lshl_b32 s82, s80, 7
          s_add_u32 {g.s_flag}, {g.s_flag}, s82
          s_add_u32 {g.s_flag}, {g.s_flag}, {F_T1}
          s_mov_b32 {g.s_ob}, {KX}
          s_cmp_ge_u32 s81, 16
          s_cselect_b32 {g.s_ori}, 1, 0
          s_cselect_b32 s{S_WT}, s{P_WV}, s{P_WK}
          s_cselect_b32 s{S_WT+1}, s{P_WV+1}, s{P_WK+1}
          s_cselect_b32 {g.s_ob}, {VX}, {g.s_ob}
          s_and_b32 s81, s81, 15
          s_branch L_jB
          L_j2:
          s_lshl_b32 {g.s_flag}, s81, 2
          s_lshl_b32 s82, s80, 6
          s_add_u32 {g.s_flag}, {g.s_flag}, s82
          s_add_u32 {g.s_flag}, {g.s_flag}, {F_T2}
          s_mov_b32 {g.s_ori}, 0
          s_mov_b32 s{S_WT}, s{P_WQ}
          s_mov_b32 s{S_WT+1}, s{P_WQ+1}
          s_mov_b32 {g.s_ob}, {QX}
          L_jB:
          s_mov_b32 s{S_WT+2}, {640*8192}
          s_mov_b32 s{S_WT+3}, 0x20000''')
    mk_srd(A, S_XS, P_BX, 2048 * 1280)
    A(f'''s_mov_b32 {g.s_ld}, 8192
          s_mov_b32 {g.s_atype}, 64
          s_lshl_b32 {g.s_wo}, s81, 9
          s_mov_b32 {g.s_epi}, 0
          s_mov_b32 {g.s_stm}, {32*8192}
          s_mov_b32 {g.s_stn}, 2048
          s_and_b32 s82, {s_wave}, 1
          s_lshl_b32 s82, s82, 2
          s_lshl_b32 s83, s80, 3
          s_add_u32 s82, s82, s83
          s_lshl_b32 s82, s82, 5
          s_lshr_b32 s83, {s_wave}, 1
          s_add_u32 s82, s82, s83
          s_lshl_b32 s83, s81, 1
          s_add_u32 s82, s82, s83
          s_lshl_b32 s82, s82, 13
          s_add_u32 {g.s_ob}, {g.s_ob}, s82
          s_branch L_gemm
          L_j3:
          s_lshl_b32 {g.s_flag}, s81, 7
          s_add_u32 {g.s_flag}, {g.s_flag}, {F_C3}''')
    mk_srd(A, S_WT, P_AWQKV, 640 * 3840)
    mk_srd(A, S_XS, P_AX, 2048 * 1280)
    A(f'''s_mov_b32 {g.s_ld}, 3840
          s_mov_b32 {g.s_atype}, 40
          s_mul_i32 {g.s_wo}, s81, 320
          s_lshr_b32 s82, s81, 2
          s_add_u32 {g.s_epi}, s82, 1
          s_mov_b32 {g.s_stm}, 1536
          s_mov_b32 {g.s_ob}, {KA}
          s_cmp_eq_u32 s82, 2
          s_cselect_b32 {g.s_ori}, 1, 0
          s_cselect_b32 {g.s_stm}, 2048, {g.s_stm}
          s_cselect_b32 {g.s_ob}, {VA}, {g.s_ob}
          s_cmp_eq_u32 s82, 0
          s_cselect_b32 {g.s_ob}, {QA}, {g.s_ob}
          s_lshl_b32 {g.s_stn}, {g.s_stm}, 6
          s_and_b32 s81, s81, 3
          s_lshl_b32 s81, s81, 3
          s_lshr_b32 s83, {s_wave}, 1
          s_lshl_b32 s83, s83, 2
          s_add_u32 s81, s81, s83
          s_lshl_b32 s81, s81, 6
          s_and_b32 s82, {s_wave}, 1
          s_lshl_b32 s82, s82, 2
          s_lshl_b32 s83, s80, 3
          s_add_u32 s82, s82, s83
          s_add_u32 s81, s81, s82
          s_mul_i32 s81, s81, {g.s_stm}
          s_add_u32 {g.s_ob}, {g.s_ob}, s81
          L_gemm:
          s_mul_i32 {g.s_xo}, s80, {256*1280}''')
    G.gemm_setup(A)
    A(f's_cmp_lg_u32 {g.s_ori}, 0\ns_cbranch_scc1 L_gemm_o1')
    G.gemm_main(A, 0)
    A(f'''s_cmp_eq_u32 {g.s_epi}, 1
          s_cbranch_scc1 L_epi_aq
          s_cmp_eq_u32 {g.s_epi}, 2
          s_cbranch_scc1 L_epi_ak
          s_branch L_epi_b
          L_gemm_o1:''')
    G.gemm_main(A, 1)
    A(f's_cmp_eq_u32 {g.s_epi}, 3\ns_cbranch_scc1 L_epi_av\nL_epi_b:')
    G.gemm_epi(A, 'B'); A('s_branch L_gemm_end\nL_epi_aq:')
    G.gemm_epi(A, 'AQ'); A('s_branch L_gemm_end\nL_epi_ak:')
    G.gemm_epi(A, 'AK'); A('s_branch L_gemm_end\nL_epi_av:')
    G.gemm_epi(A, 'AV'); A('L_gemm_end:')
    stamp(A, 11)
    signal_add(A, g.s_flag)
    A('s_branch L_next')

def bulk_dispatch(A):
    A(f'''s_mov_b32 {s_rnd}, -1
          L_next:
          s_add_u32 {s_rnd}, {s_rnd}, 1''')
    if util.DEV['stamp']:
        for r in range(8):
            A(f's_cmp_lg_u32 {s_rnd}, {r}\ns_cbranch_scc1 L_st{r}')
            stamp(A, 1 + r)
            A(f'L_st{r}:')
    A(f'''s_cmp_gt_u32 {s_rnd}, {LASTR}
          s_cbranch_scc1 L_exit
          s_lshr_b32 s84, {s_i}, 4
          s_and_b32 s85, {s_i}, 15
          s_cmp_eq_u32 {s_rnd}, 0
          s_cbranch_scc0 L_r1
          s_and_b32 s80, {s_j}, 6
          s_add_u32 s80, s80, s84
          s_and_b32 s81, {s_j}, 1
          s_lshl_b32 s81, s81, 4
          s_add_u32 s81, s81, s85
          s_branch L_j1
          L_r1:
          s_cmp_eq_u32 {s_rnd}, 1
          s_cbranch_scc0 L_r2
          s_cmp_ge_u32 {s_j}, 3
          s_cbranch_scc1 L_r1b
          s_lshr_b32 s80, {s_i}, 2
          s_and_b32 s81, {s_i}, 3
          s_lshl_b32 s82, {s_j}, 2
          s_add_u32 s81, s81, s82
          s_branch L_j3
          L_r1b:
          s_cmp_eq_u32 {s_j}, 5
          s_cbranch_scc1 L_r1c
          s_add_u32 s80, s84, 6
          s_sub_u32 s81, {s_j}, 3
          s_lshl_b32 s81, s81, 4
          s_add_u32 s81, s81, s85
          s_branch L_j1
          L_r1c:
          s_mov_b32 s80, s84
          s_mov_b32 s81, s85
          s_branch L_j2
          L_r2:
          s_cmp_eq_u32 {s_rnd}, 2
          s_cbranch_scc0 L_r3
          s_cmp_lt_u32 {s_j}, 3
          s_cbranch_scc1 L_r2b
          s_sub_u32 s80, {s_j}, 2
          s_lshl_b32 s80, s80, 1
          s_add_u32 s80, s80, s84
          s_mov_b32 s81, s85
          s_branch L_j2
          L_r2b:
          s_lshl_b32 s80, {s_j}, 2
          s_branch L_j4
          L_r3:
          s_cmp_eq_u32 {s_rnd}, 3
          s_cbranch_scc0 L_r4
          s_cmp_eq_u32 {s_j}, 5
          s_cbranch_scc1 L_prep
          s_lshl_b32 s80, {s_j}, 2
          s_add_u32 s80, s80, 12
          s_branch L_j4
          L_r4:
          s_cmp_eq_u32 {s_rnd}, 4
          s_cbranch_scc1 L_j5
          s_cmp_eq_u32 {s_rnd}, 5
          s_cbranch_scc1 L_j6
          s_cmp_eq_u32 {s_rnd}, 6
          s_cbranch_scc1 L_j7
          s_branch L_exit''')

startup(A)
bulk_dispatch(A)
job_gemm_params(A)
try:
    import bulk_rest as R
    R.emit(A, OPT)
except ImportError:
    A('L_j4:\nL_prep:\nL_j5:\nL_j6:\nL_j7:\ns_branch L_next')
A('L_chain:')
if OPT.get('clktest'):
    A(f'''s_cmp_lg_u32 {s_wave}, 0
          s_cbranch_scc1 L_exit
          s_lshl_b32 s70, {s_wg}, 9
          s_add_u32 s70, s70, {DBGT+64}
          s_mov_b32 s71, 24
          v_mov_b32 v0, 0
          s_mov_b64 exec, 1
          L_ck:
          s_memtime s[72:73]
          s_memrealtime s[74:75]
          s_waitcnt lgkmcnt(0)
          v_mov_b32 v4, s72
          v_mov_b32 v5, s73
          v_mov_b32 v6, s74
          v_mov_b32 v7, s75
          buffer_store_dwordx4 v[4:7], v0, {srd(S_WS)}, s70 offen
          s_add_u32 s70, s70, 16
          s_mov_b32 s76, 1500
          L_ck2:
          v_add_u32 v8, v8, v8
          s_sub_u32 s76, s76, 1
          s_cbranch_scc0 L_ck2
          s_sub_u32 s71, s71, 1
          s_cbranch_scc0 L_ck''')
if not NOCHAIN:
    import importlib; C = importlib.import_module(OPT.get('chain', 'chain2'))
    C.emit(A, OPT, count_all)
A('L_exit:\ns_endpgm')

hdr = open('cdna_kernels/' + NAME + '.s.ref').read().split('\n')
head = [l for l in hdr if l.startswith(';') and '@launch' not in l and not l.startswith('; Override') and not l.startswith('; grid=')]
body = A.finish()
out = '\n'.join(head) + '\n; @launch grid=(256,1,1) block=(256,1,1) lds=163840\n'
out += f'''.amdgcn_target "amdgcn-amd-amdhsa--gfx950"
.text
.globl {KL}
.p2align 8
.type {KL},@function
{KL}:
''' + body + f'''.section .rodata,"a"
.p2align 6
.amdhsa_kernel {KL}
  .amdhsa_next_free_vgpr 512
  .amdhsa_next_free_sgpr 102
  .amdhsa_accum_offset 256
  .amdhsa_group_segment_fixed_size 0
  .amdhsa_kernarg_size 104
  .amdhsa_user_sgpr_count 2
  .amdhsa_user_sgpr_kernarg_segment_ptr 1
  .amdhsa_system_sgpr_workgroup_id_x 1
.end_amdhsa_kernel
'''
open(sys.argv[1], 'w').write(out)
print('lines', out.count('\n'), 'bytes', len(out), 'pads', A.npad)
```

```python
from common import *
from util import stamp, register
V_LANE = 1
XA = 4
WA = 8
DX = 12
DW = 20
XF = 32
WFR = 64
VT = 96
s_xo = 's64'; s_wo = 's65'; s_ld64 = 's66'; s_m0a = 's67'; s_cnt = 's68'
s_ob = 's69'; s_stm = 's70'; s_stn = 's71'; s_epi = 's72'; s_flag = 's73'; s_atype = 's74'; s_ld = 's75'; s_ori = 's76'
s_hf = 's88'; s_inc = 's89'; s_xm = 's[86:87]'; VCNT = 130
s_t0 = 's77'; s_t1 = 's78'; s_t2 = 's79'; s_t3 = 's80'

def gemm_setup(A):
    t0, t1, t2, t3 = VT, VT + 1, VT + 2, VT + 3
    A(f'''s_and_b32 {s_t0}, {s_wave}, 1
          s_lshr_b32 {s_t1}, {s_wave}, 1
          v_and_b32 v{t0}, 31, v{V_LANE}
          v_lshrrev_b32 v{t1}, 5, v{V_LANE}
          v_lshrrev_b32 v{t2}, 1, v{t0}
          v_and_b32 v{t2}, 7, v{t2}
          s_lshl_b32 {s_t2}, {s_t0}, 14
          v_lshlrev_b32 v{t0}, 7, v{t0}
          v_add_u32 v{t0}, {s_t2}, v{t0}''')
    for u in range(4):
        A(f'''v_add_u32 v{t3}, {2*u}, v{t1}
              v_xor_b32 v{t3}, v{t3}, v{t2}
              v_lshlrev_b32 v{t3}, 4, v{t3}
              v_add_u32 v{XA+u}, v{t0}, v{t3}''')
    A(f'''v_bfe_u32 v{t0}, v{V_LANE}, 2, 2
          v_lshlrev_b32 v{t1}, 3, v{t1}
          v_add_u32 v{t1}, v{t1}, v{t0}
          v_lshlrev_b32 v{t1}, 9, v{t1}
          v_add_u32 v{t1}, 0x8000, v{t1}
          v_bfe_u32 v{t2}, v{V_LANE}, 4, 1
          v_lshlrev_b32 v{t2}, 5, v{t2}
          v_and_b32 v{t3}, 3, v{V_LANE}
          v_lshlrev_b32 v{t3}, 3, v{t3}
          v_add_u32 v{t2}, v{t2}, v{t3}
          s_lshl_b32 {s_t2}, {s_t1}, 2''')
    for tn in range(4):
        A(f'''s_add_u32 {s_t3}, {s_t2}, {tn}
              s_mul_i32 {s_t3}, {s_t3}, {s_atype}
              v_add_u32 v{t3}, {s_t3}, v{t2}
              v_lshrrev_b32 v{VT+4}, 6, v{t3}
              v_xor_b32 v{VT+4}, v{VT+4}, v{t0}
              v_lshlrev_b32 v{VT+4}, 6, v{VT+4}
              v_and_b32 v{t3}, 63, v{t3}
              v_add3_u32 v{WA+tn}, v{t1}, v{VT+4}, v{t3}''')
    A(f'''v_lshrrev_b32 v{t0}, 3, v{V_LANE}
          s_lshl_b32 {s_t2}, {s_wave}, 6
          v_add_u32 v{t0}, {s_t2}, v{t0}
          s_movk_i32 {s_t3}, 1280
          v_mul_lo_u32 v{t0}, v{t0}, {s_t3}
          v_lshrrev_b32 v{t1}, 4, v{V_LANE}
          v_and_b32 v{t2}, 7, v{V_LANE}''')
    for n in range(8):
        A(f'''v_add_u32 v{t3}, {(4*n) & 7}, v{t1}
              v_xor_b32 v{t3}, v{t3}, v{t2}
              v_lshlrev_b32 v{t3}, 4, v{t3}
              v_add_u32 v{t3}, {n*10240 - (n % 4)*1024}, v{t3}
              v_add_u32 v{DX+n}, v{t0}, v{t3}''')
    A(f'''v_lshrrev_b32 v{t0}, 5, v{V_LANE}
          s_lshl_b32 {s_t2}, {s_wave}, 4
          v_add_u32 v{t1}, {s_t2}, v{t0}
          v_mul_lo_u32 v{t1}, v{t1}, {s_ld}
          v_and_b32 v{t2}, 3, v{V_LANE}
          v_lshlrev_b32 v{t2}, 4, v{t2}
          v_add_u32 v{t1}, v{t1}, v{t2}
          v_bfe_u32 v{t2}, v{V_LANE}, 2, 3''')
    for n in range(8):
        A(f'''v_add_u32 v{t3}, {(2*n) & 3}, v{t0}
              v_xor_b32 v{t3}, v{t3}, v{t2}
              v_lshlrev_b32 v{t3}, 6, v{t3}
              s_mul_i32 {s_t3}, {s_ld}, {2*n}
              s_sub_u32 {s_t3}, {s_t3}, {(n % 4)*1024}
              v_add3_u32 v{DW+n}, v{t1}, v{t3}, {s_t3}''')
    A(f'''s_lshl_b32 {s_ld64}, {s_ld}, 6
          s_lshl_b32 {s_m0a}, {s_wave}, 13''')

def dma_ops(half, hv=False):
    g = []
    for n in range(8):
        pre = ''
        if n % 4 == 0:
            pre = f's_add_u32 m0, {s_m0a}, {(n//4)*4096 + half*32768}\n'
        if half == 0:
            ins = f'buffer_load_dwordx4 v{DX+n}, {srd(S_XS)}, {s_xo} offen offset:{(n%4)*1024} lds'
            g.append((pre, f's_mov_b64 exec, {s_xm}\n{ins}\ns_mov_b64 exec, -1' if hv else ins))
        else:
            g.append((pre, f'buffer_load_dwordx4 v{DW+n}, {srd(S_WT)}, {s_wo} offen offset:{(n%4)*1024} lds'))
    return g

def frag_reads(u, st, hv=False):
    r = []
    for t in range(4):
        if t < 2 or not hv: r.append(f'ds_read_b128 {vr(XF+16*st+4*t,4)}, v{XA+u} offset:{t*4096}')
        r.append(f'ds_read_b64_tr_b16 {vr(WFR+16*st+4*t,2)}, v{WA+t} offset:{u*8192}')
        r.append(f'ds_read_b64_tr_b16 {vr(WFR+16*st+4*t+2,2)}, v{WA+t} offset:{u*8192+2048}')
    return r

import os
EXP=os.environ.get('GEXP','')
def kstep(A, ori, st, reads, dma, post=None, hv=False):
    rd = list(reads); dm = list(dma)
    if 'nodma' in EXP: dm = []
    if 'nord' in EXP: rd = []
    k = 0
    dp = 1 if hv else 2
    for tm in range(2 if hv else 4):
        for tn in range(4):
            acc = ar(16 * (4 * tm + tn), 16)
            x = vr(XF + 16 * st + 4 * tm, 4); w = vr(WFR + 16 * st + 4 * tn, 4)
            pre = dm[0][0] if (dm and k % dp == 0) else ''
            if pre: A(pre)
            if ori == 0: A(f'v_mfma_f32_32x32x16_bf16 {acc}, {w}, {x}, {acc}')
            else: A(f'v_mfma_f32_32x32x16_bf16 {acc}, {x}, {w}, {acc}')
            if dm and k % dp == 0: A(dm.pop(0)[1])
            for _ in range(2 if k < 4 else 1):
                if rd: A(rd.pop(0))
            k += 1
    if post: A(post)

WE = [1]
def dma_pairs(g): return [(g[i][0], g[i][1] + '\n' + g[i+1][1]) for i in range(0, 8, 2)]
def stage(A, ori, dma0, dma3, nxt, hv=False):
    we = hv and WE[0]
    if we: dma0 = False
    A('s_waitcnt lgkmcnt(0)')
    kstep(A, ori, 0, frag_reads(1, 1, hv), dma_ops(1) if dma0 else [],
          post=(f's_add_u32 {s_wo}, {s_wo}, {s_ld64}\ns_xor_b32 {s_m0a}, {s_m0a}, 0x10000' if dma0 else None), hv=hv)
    A('s_waitcnt lgkmcnt(0)')
    kstep(A, ori, 1, frag_reads(2, 0, hv), [], hv=hv)
    A('s_waitcnt lgkmcnt(0)')
    kstep(A, ori, 0, frag_reads(3, 1, hv), [], hv=hv)
    if nxt:
        A('s_waitcnt vmcnt(0) lgkmcnt(0)\ns_barrier')
        for r in list(range(XA, XA + 4)) + list(range(WA, WA + 4)):
            A(f'v_xor_b32 v{r}, 0x10000, v{r}')
    else:
        A('s_waitcnt lgkmcnt(0)')
    if we:
        kstep(A, ori, 1, frag_reads(0, 0, hv) if nxt else [], dma_pairs(dma_ops(1)) + dma_pairs(dma_ops(0, hv)) if dma3 else [],
              post=(f's_add_u32 {s_xo}, {s_xo}, 128\ns_add_u32 {s_wo}, {s_wo}, {s_ld64}\ns_xor_b32 {s_m0a}, {s_m0a}, 0x10000' if dma3 else None), hv=hv)
        return
    kstep(A, ori, 1, frag_reads(0, 0, hv) if nxt else [], dma_ops(0, hv) if dma3 else [],
          post=(f's_add_u32 {s_xo}, {s_xo}, 128' if dma3 else None), hv=hv)

PFN = [0]
def gemm_main(A, ori, hv=False):
    adv = f'''s_add_u32 {s_xo}, {s_xo}, 128
          s_add_u32 {s_wo}, {s_wo}, {s_ld64}
          s_xor_b32 {s_m0a}, {s_m0a}, 0x10000'''
    NPF = PFN[0]
    we = hv and WE[0]
    adw = f's_add_u32 {s_wo}, {s_wo}, {s_ld64}\ns_xor_b32 {s_m0a}, {s_m0a}, 0x10000'
    def pfw():
        A(f'v_lshrrev_b32 v{VCNT+2}, 2, v{V_LANE}\ns_lshl_b32 s81, {s_wave}, 4\nv_add_u32 v{VCNT+2}, s81, v{VCNT+2}\nv_mul_lo_u32 v{VCNT+2}, v{VCNT+2}, {s_ld}')
        A(f'v_and_b32 v{VCNT+3}, 3, v{V_LANE}\nv_lshl_add_u32 v{VCNT+2}, v{VCNT+3}, 7, v{VCNT+2}\ns_mov_b32 s81, {s_wo}')
        for k in range(NPF): A(f's_add_u32 s81, s81, {s_ld64}\nbuffer_load_dword v{VCNT+4}, v{VCNT+2}, {srd(S_WT)}, s81 offen')
    if hv:
        lx = A.lab('hx')
        A(f's_cmp_eq_u64 {s_xm}, 0\ns_cbranch_scc0 {lx}')
        for pre, ins in dma_ops(1): A(pre + ins)
        A(adv); A(f's_add_u32 {s_xo}, {s_xo}, 128')
        if we:
            for pre, ins in dma_ops(1): A(pre + ins)
            A(adw)
        pfw()
        for k in range(128): A(f'v_accvgpr_write_b32 a{k}, 0')
        A(f's_waitcnt vmcnt({NPF + (8 if we else 0)})\ns_branch {lx}_e\n{lx}:')
    for pre, ins in dma_ops(0): A(pre + ins)
    for pre, ins in dma_ops(1): A(pre + ins)
    A(adv)
    if we:
        for pre, ins in dma_ops(1): A(pre + ins)
    for pre, ins in dma_ops(0): A(pre + ins)
    A(f's_add_u32 {s_xo}, {s_xo}, 128')
    if we: A(adw)
    if hv:
        pfw()
        A(f's_lshl_b32 s81, {s_wave}, 6\nv_add_u32 v{VCNT+3}, s81, v{V_LANE}\nv_mul_u32_u24 v{VCNT+3}, 1280, v{VCNT+3}')
        for k in range(NPF): A(f'buffer_load_dword v{VCNT+4}, v{VCNT+3}, {srd(S_XS)}, {s_xo} offen offset:{128*k}')
    for k in range(128 if hv else 256): A(f'v_accvgpr_write_b32 a{k}, 0')
    A(f's_waitcnt vmcnt({8+2*NPF+(8 if we else 0) if hv else 8})')
    if hv: A(f'{lx}_e:')
    A('s_barrier')
    lr = A.lab('gr')
    A(f's_cmp_lg_u32 {s_rnd}, 0\ns_cbranch_scc1 {lr}')
    register(A, 2, 's81')
    A(f'{lr}:')
    for r in frag_reads(0, 0, hv): A(r)
    lp = A.lab('gl')
    A(f's_mov_b32 {s_cnt}, 8\n{lp}:')
    stage(A, ori, True, True, True, hv)
    A(f's_sub_u32 {s_cnt}, {s_cnt}, 1\ns_cmp_lg_u32 {s_cnt}, 0\ns_cbranch_scc1 {lp}')
    A(f'v_lshlrev_b32 v{VCNT+1}, 2, v{V_LANE}\nbuffer_load_dword v{VCNT}, v{VCNT+1}, {srd(S_DB)}, 0 offen sc1')
    stage(A, ori, True, False, True, hv)
    stage(A, ori, False, False, False, hv)

def gemm_epi(A, kind, ntm=4):
    va = VT; va2 = VT + 1; vm = VT + 2
    A(f'v_lshlrev_b32 v{va}, 4, v{V_LANE}\nv_lshlrev_b32 v{va2}, 3, v{V_LANE}')
    if kind == 'AV':
        A(f'v_and_b32 v{vm}, 31, v{V_LANE}\nv_cmp_eq_u32 vcc, 20, v{vm}\nv_mov_b32 v{vm}, 0x3f803f80')
    if kind in ('AQ', 'AK'):
        A(f'v_cmp_lt_u32 vcc, 31, v{V_LANE}\nv_mov_b32 v{vm}, {"0x3f803f80" if kind == "AK" else "0"}\nv_mov_b32 v{vm+1}, 0')
    if kind == 'AQ':
        A(f's_mov_b32 {s_t3}, {f2u(LOG2E * 20 ** -0.5)}')
    slot = 0
    for tm in range(ntm):
        A(f's_mul_i32 {s_t0}, {s_stm}, {tm}\ns_add_u32 {s_t0}, {s_t0}, {s_ob}')
        for tn in range(4):
            b = XF + 24 * slot; slot = (slot + 1) % 2
            n = 12 if kind in ('AQ', 'AK') else 16
            for r in range(n): A(f'v_accvgpr_read_b32 v{b+r}, a{16*(4*tm+tn)+r}')
            if kind == 'AQ':
                for r in range(n): A(f'v_mul_f32 v{b+r}, {s_t3}, v{b+r}')
            for r in range(n // 2): A(f'v_cvt_pk_bf16_f32 v{b+16+r}, v{b+2*r}, v{b+2*r+1}')
            if kind == 'AV':
                for r in range(8): A(f'v_cndmask_b32 v{b+16+r}, v{b+16+r}, v{vm}, vcc')
            if kind in ('AQ', 'AK'):
                A(f'v_cndmask_b32 v{b+20}, v{b+20}, v{vm}, vcc\nv_cndmask_b32 v{b+21}, v{b+21}, v{vm+1}, vcc')
            A(f'buffer_store_dwordx4 {vr(b+16,4)}, v{va}, {srd(S_WS)}, {s_t0} offen sc1')
            if kind in ('AQ', 'AK'):
                A(f'buffer_store_dwordx2 {vr(b+20,2)}, v{va2}, {srd(S_WS)}, {s_t0} offen offset:1024 sc1')
            else:
                A(f'buffer_store_dwordx4 {vr(b+20,4)}, v{va}, {srd(S_WS)}, {s_t0} offen offset:1024 sc1')
            if tn < 3: A(f's_add_u32 {s_t0}, {s_t0}, {s_stn}')
```

```python
from common import *
from util import *

NINF = '0xff800000'

def j4(A):
    QF = [8, 16]; KV = 32; S = [96, 112]; P = [128, 136]; O = [144, 160]
    NM = [24, 25]; THR = [26, 27]; LO = [28, 29]; T = 176
    VA16 = 4; VA8 = 5
    s_h = 's80'; s_qb = 's81'; s_kb = 's82'; s_vb = 's83'; s_t = 's84'; s_k = 's85'; s_v = 's86'; s_c = 's87'; s_T = 's88'
    A(f'''L_j4:
          s_lshr_b32 s82, {s_i}, 3
          s_add_u32 {s_h}, {s_h}, s82
          s_and_b32 {s_qb}, {s_i}, 7
          s_lshr_b32 s82, {s_h}, 3
          s_lshl_b32 s82, s82, 7
          s_add_u32 s82, s82, {F_C3}''')
    wait_words(A, 's82', 3, 512, 8)
    A(f'''v_lshlrev_b32 v{VA16}, 4, v{V_LANE}
          v_lshlrev_b32 v{VA8}, 3, v{V_LANE}
          s_mul_i32 {s_kb}, {s_h}, {64*1536}
          s_lshl_b32 {s_vb}, {s_h}, 17
          s_lshl_b32 {s_T}, {s_qb}, 3
          s_lshl_b32 s89, {s_wave}, 1
          s_add_u32 {s_T}, {s_T}, s89
          s_mul_i32 s89, {s_T}, 1536
          s_add_u32 s89, s89, {s_kb}
          s_add_u32 s89, s89, {QA}
          s_add_u32 {s_kb}, {s_kb}, {KA}
          s_add_u32 {s_vb}, {s_vb}, {VA}
          buffer_load_dwordx4 {vr(QF[0],4)}, v{VA16}, {srd(S_WS)}, s89 offen
          buffer_load_dwordx2 {vr(QF[0]+4,2)}, v{VA8}, {srd(S_WS)}, s89 offen offset:1024
          buffer_load_dwordx4 {vr(QF[1],4)}, v{VA16}, {srd(S_WS)}, s89 offen offset:1536
          buffer_load_dwordx2 {vr(QF[1]+4,2)}, v{VA8}, {srd(S_WS)}, s89 offen offset:2560''')
    for r in range(KV, KV + 64): A(f'v_mov_b32 v{r}, 0')
    for x in range(2):
        A(f'v_mov_b32 v{QF[x]+6}, 0\nv_mov_b32 v{QF[x]+7}, 0\nv_mov_b32 v{NM[x]}, 0\nv_mov_b32 v{THR[x]}, {NINF}\nv_mov_b32 v{LO[x]}, {NINF}')
        for r in range(16): A(f'v_mov_b32 v{O[x]+r}, 0')
    for r in range(16): A(f'v_mov_b32 v{S[1]+r}, {NINF}')
    def loads(st):
        b = KV + 16 * st
        A(f'''s_min_u32 s89, {s_t}, 63
              s_mul_i32 {s_k}, s89, 1536
              s_add_u32 {s_k}, {s_k}, {s_kb}
              s_lshl_b32 {s_v}, s89, 11
              s_add_u32 {s_v}, {s_v}, {s_vb}
              s_add_u32 {s_t}, {s_t}, 1
              buffer_load_dwordx4 {vr(b,4)}, v{VA16}, {srd(S_WS)}, {s_k} offen
              buffer_load_dwordx2 {vr(b+4,2)}, v{VA8}, {srd(S_WS)}, {s_k} offen offset:1024
              buffer_load_dwordx4 {vr(b+8,4)}, v{VA16}, {srd(S_WS)}, {s_v} offen
              buffer_load_dwordx4 {vr(b+12,4)}, v{VA16}, {srd(S_WS)}, {s_v} offen offset:1024''')
    def smm(x, st):
        b = KV + 16 * st
        A(f'''v_mfma_f32_32x32x16_bf16 {vr(S[x],16)}, {vr(b,4)}, {vr(QF[x],4)}, 0
              v_mfma_f32_32x32x16_bf16 {vr(S[x],16)}, {vr(b+4,4)}, {vr(QF[x]+4,4)}, {vr(S[x],16)}''')
    def pv(x, st):
        b = KV + 16 * st
        A(f'''v_mfma_f32_32x32x16_bf16 {vr(O[x],16)}, {vr(b+8,4)}, {vr(P[x],4)}, {vr(O[x],16)}
              v_mfma_f32_32x32x16_bf16 {vr(O[x],16)}, {vr(b+12,4)}, {vr(P[x]+4,4)}, {vr(O[x],16)}''')
    rare = []
    def soft(x):
        s = S[x]
        A(f'''v_max3_f32 v{T}, v{s}, v{s+1}, v{s+2}
              v_max3_f32 v{T+1}, v{s+3}, v{s+4}, v{s+5}
              v_max3_f32 v{T}, v{T}, v{s+6}, v{s+7}
              v_max3_f32 v{T+1}, v{T+1}, v{s+8}, v{s+9}
              v_max3_f32 v{T}, v{T}, v{s+10}, v{s+11}
              v_max3_f32 v{T+1}, v{T+1}, v{s+12}, v{s+13}
              v_max3_f32 v{T}, v{T}, v{s+14}, v{s+15}
              v_max_f32 v{T}, v{T}, v{T+1}
              v_cmp_gt_f32 vcc, v{T}, v{THR[x]}''')
        lr = A.lab('rr'); lb = A.lab('rb')
        A(f's_cbranch_vccnz {lr}\n{lb}:')
        rare.append((lr, lb, x))
        for r in range(16):
            A(f'v_exp_f32 v{s+r}, v{s+r}')
            if r % 2 == 1 and r >= 3: A(f'v_cvt_pk_bf16_f32 v{P[x]+(r-3)//2}, v{s+r-3}, v{s+r-2}')
        A(f'v_cvt_pk_bf16_f32 v{P[x]+7}, v{s+14}, v{s+15}')
    A(f's_mov_b32 {s_t}, 0')
    for st in range(3): loads(st)
    A(f's_mov_b32 {s_c}, 16\nL_j4_loop:')
    for st in range(4):
        A('s_waitcnt vmcnt(8)')
        smm(0, st)
        soft(1)
        pv(1, (st + 3) % 4)
        smm(1, st)
        loads((st + 3) % 4)
        soft(0)
        pv(0, st)
    A(f's_sub_u32 {s_c}, {s_c}, 1\ns_cmp_lg_u32 {s_c}, 0\ns_cbranch_scc1 L_j4_loop')
    soft(1)
    pv(1, 3)
    A(f'''s_mul_i32 s89, {s_T}, 40
          s_add_u32 s90, s89, {s_h}
          s_lshl_b32 s90, s90, 10
          s_add_u32 s90, s90, {OA}
          s_lshr_b32 s91, {s_h}, 2
          s_add_u32 s91, s91, s89
          s_add_u32 s91, s91, 32
          s_lshl_b32 s91, s91, 10
          s_add_u32 s91, s91, {OA}
          s_and_b32 s89, {s_h}, 2
          s_lshl_b32 s89, s89, 8
          s_add_u32 s91, s91, s89
          s_and_b32 s89, {s_h}, 1
          s_lshl_b32 s89, s89, 3
          s_add_u32 s91, s91, s89''')
    for x in range(2):
        o = O[x]
        A(f'''v_mov_b32 v{T}, v{o+8}
              v_mov_b32 v{T+1}, v{o+8}
              v_permlane32_swap_b32 v{T}, v{T+1}
              v_rcp_f32 v{T+1}, v{T+1}''')
        for r in range(12): A(f'v_mul_f32 v{o+r}, v{o+r}, v{T+1}')
        for r in range(6): A(f'v_cvt_pk_bf16_f32 v{P[x]+r}, v{o+2*r}, v{o+2*r+1}')
        A(f'''buffer_store_dwordx4 {vr(P[x],4)}, v{VA16}, {srd(S_WS)}, s90 offen sc1
              s_mov_b64 exec, 0xffffffff
              buffer_store_dwordx2 {vr(P[x]+4,2)}, v{VA16}, {srd(S_WS)}, s91 offen sc1
              s_mov_b64 exec, -1
              s_add_u32 s90, s90, {40*1024}
              s_add_u32 s91, s91, {40*1024}''')
    A(f's_lshl_b32 s89, {s_qb}, 7\ns_add_u32 s89, s89, {F_C4}')
    signal_add(A, 's89')
    A('s_branch L_next')
    for lr, lb, x in rare:
        s = S[x]; o = O[x]
        A(f'''{lr}:
              v_mov_b32 v{T+1}, v{T}
              v_permlane32_swap_b32 v{T}, v{T+1}
              v_max3_f32 v{T}, v{T}, v{T+1}, v{LO[x]}
              v_sub_f32 v{T+1}, v{NM[x]}, v{T}
              v_cvt_pk_bf16_f32 v{T+2}, v{T+1}, v{T+1}
              v_lshlrev_b32 v{T+2}, 16, v{T+2}
              v_sub_f32 v{T+3}, v{T+1}, v{T+2}
              v_cvt_pk_bf16_f32 v{T+3}, v{T+1}, v{T+3}
              v_and_b32 v{T+4}, 0xffff0000, v{T+3}
              v_add_f32 v{T+2}, v{T+2}, v{T+4}
              v_sub_f32 v{T+4}, v{T+2}, v{NM[x]}
              v_mov_b32 v{NM[x]}, v{T+2}
              v_min_f32 v{T+5}, 0, v{T+4}
              v_exp_f32 v{T+5}, v{T+5}
              s_mov_b32 exec_lo, 0
              v_mov_b32 v{QF[x]+4}, v{T+3}
              s_mov_b32 exec_lo, -1
              v_mov_b32 v{THR[x]}, 0x41000000
              v_mov_b32 v{LO[x]}, 0''')
        for r in range(16): A(f'v_add_f32 v{s+r}, v{s+r}, v{T+4}')
        for r in range(12): A(f'v_mul_f32 v{o+r}, v{o+r}, v{T+5}')
        A(f's_branch {lb}')

def prep(A):
    RH = 8; CO = 16; VO = 24; RA = 32; D = 40; VA16 = 4
    A(f'''L_prep:
          v_lshlrev_b32 v{VA16}, 4, v{V_LANE}
          s_mul_i32 s80, {s_wave}, 5120
          s_mov_b32 s81, 52429''')
    for n in range(5):
        A(f'''s_add_u32 s82, s80, {n*1024}
              v_add_u32 v2, s82, v{VA16}
              v_lshrrev_b32 v3, 8, v2
              v_mul_lo_u32 v3, v3, s81
              v_lshrrev_b32 v{RH+n}, 18, v3
              v_mul_u32_u24 v3, 1280, v{RH+n}
              v_sub_u32 v{CO+n}, v2, v3''')
    A(f'''v_lshrrev_b32 v2, 5, v{V_LANE}
          v_lshlrev_b32 v2, 2, v2
          v_bfe_u32 v3, v{V_LANE}, 2, 2
          v_add_u32 v2, v2, v3
          v_mul_u32_u24 v2, 1280, v2
          v_bfe_u32 v3, v{V_LANE}, 4, 1
          v_lshlrev_b32 v3, 5, v3
          v_add_u32 v2, v2, v3
          v_and_b32 v3, 3, v{V_LANE}
          v_lshlrev_b32 v3, 3, v3
          s_mul_i32 s82, {s_wave}, 320
          v_add3_u32 v{RA}, v2, v3, s82''')
    for batch in range(2):
        for e in range(5):
            bb = batch * 5 + e
            if bb == 0: mk_srd(A, S_WT, P_WO, 4096 * 1280)
            if bb == 8: mk_srd(A, S_WT, P_AWO, 640 * 1280)
            if bb in (0, 9):
                for n in range(5):
                    if bb == 0:
                        A(f'v_mul_u32_u24 v2, 1280, v{RH+n}\nv_add_u32 v{VO+n}, v2, v{CO+n}')
                    else:
                        A(f'''v_and_b32 v2, 3, v{RH+n}
                              v_bfe_u32 v3, v{RH+n}, 2, 1
                              v_mad_u32_u24 v2, v3, 40, v2
                              v_lshrrev_b32 v3, 3, v{RH+n}
                              v_mad_u32_u24 v2, v3, 20, v2
                              v_mul_u32_u24 v2, 1280, v2
                              v_add_u32 v{VO+n}, v2, v{CO+n}''')
            if bb < 8: A(f's_add_u32 s82, {s_i}, {32*bb}\ns_mul_i32 s82, s82, {16*1280}')
            elif bb == 8: A(f's_mul_i32 s82, {s_i}, {20*1280}')
            else: A(f's_and_b32 s82, {s_i}, 7\ns_mul_i32 s82, s82, {80*1280}\ns_add_u32 s82, s82, {16*1280}')
            for n in range(5):
                A(f's_add_u32 m0, s80, {e*20480 + n*1024}\nbuffer_load_dwordx4 v{VO+n}, {srd(S_WT)}, s82 offen lds')
        A('s_waitcnt vmcnt(0)\ns_barrier')
        for e in range(5):
            bb = batch * 5 + e
            if e == 3: A(f'v_add_u32 v{RA+1}, {3*20480}, v{RA}')
            for n in range(5):
                ra = RA if e < 3 else RA + 1; eo = (e if e < 3 else e - 3) * 20480
                A(f'''ds_read_b64_tr_b16 {vr(D+20*e+4*n,2)}, v{ra} offset:{eo + n*64}
                      ds_read_b64_tr_b16 {vr(D+20*e+4*n+2,2)}, v{ra} offset:{eo + n*64 + 8*1280}''')
        A('s_waitcnt lgkmcnt(0)\ns_barrier')
        for e in range(5):
            bb = batch * 5 + e
            if bb == 9: A(f's_cmp_ge_u32 {s_i}, 8\ns_cbranch_scc1 L_prep_e')
            for n in range(5):
                A(f'''s_mul_i32 s82, {s_wave}, 5
                      s_add_u32 s82, s82, {n}
                      s_lshr_b32 s83, s82, 2
                      s_mul_i32 s83, s83, 296
                      s_add_u32 s83, s83, {s_i}
                      s_add_u32 s83, s83, {32*bb}
                      s_lshl_b32 s83, s83, 2
                      s_and_b32 s82, s82, 3
                      s_add_u32 s83, s83, s82
                      s_lshl_b32 s83, s83, 10
                      s_add_u32 s83, s83, {WF}
                      buffer_store_dwordx4 {vr(D+20*e+4*n,4)}, v{VA16}, {srd(S_WS)}, s83 offen sc1''')
    A(f'L_prep_e:\ns_mov_b32 s82, {F_CP}')
    signal_add(A, 's82')
    A('s_branch L_next')

OFL = ['', '']
def fgemm(A):
    FR = 32; VA16 = 4
    def ld(e):
        b = FR + 24 * e
        A(f'''buffer_load_dwordx4 {vr(b,4)}, v{VA16}, {srd(S_WS)}, s80 offen
              buffer_load_dwordx4 {vr(b+4,4)}, v{VA16}, {srd(S_WS)}, s81 offen
              s_add_u32 s80, s80, 1024
              s_add_u32 s81, s81, 1024''')
        for tn in range(4):
            A(f'buffer_load_dwordx4 {vr(b+8+4*tn,4)}, v{VA16}, {srd(S_WS)}, s82 offen offset:{tn*1024}')
        A('s_add_u32 s82, s82, 4096')
    def body(load):
        for e in range(8):
            b = FR + 24 * e
            A(f's_waitcnt vmcnt({42 if load else 42-6*e})')
            for tm in range(2):
                for tn in range(4):
                    acc = ar(16 * (4 * tm + tn), 16)
                    A(f'v_mfma_f32_32x32x16_bf16 {acc}, {vr(b+8+4*tn,4)}, {vr(b+4*tm,4)}, {acc}')
            if load: ld(e)
    A(f'L_fg:\nv_lshlrev_b32 v{VA16}, 4, v{V_LANE}')
    for e in range(8): ld(e)
    for k in range(128): A(f'v_accvgpr_write_b32 a{k}, 0')
    A('s_cmp_eq_u32 s83, 1\ns_cbranch_scc1 L_fg_last\nL_fg_loop:')
    body(True)
    A('s_sub_u32 s83, s83, 1\ns_cmp_lg_u32 s83, 1\ns_cbranch_scc1 L_fg_loop\nL_fg_last:')
    body(False)
    A(f's_lshl_b32 s85, {s_wave}, 15\nv_add_u32 v5, s85, v{VA16}')
    for t in range(8):
        for q in range(4):
            A(f'ds_write_b128 v5, {ar(16*t+4*q,4)} offset:{t*4096+q*1024}')
    A(f'''s_waitcnt lgkmcnt(0)
          s_barrier
          s_lshl_b32 s85, {s_wave}, 12
          v_add_u32 v5, s85, v{VA16}
          v_add_u32 v6, 0x10000, v5''')
    for tm in range(2):
        for w in range(4):
            for q in range(4):
                A(f'ds_read_b128 {vr(FR+64*tm+16*w+4*q,4)}, v{5 if w < 2 else 6} offset:{(w%2)*32768 + tm*16384 + q*1024}')
    A(f'''v_and_b32 v7, 31, v{V_LANE}
          v_mul_u32_u24 v7, 2560, v7
          v_lshrrev_b32 v8, 5, v{V_LANE}
          v_lshlrev_b32 v8, 4, v8
          v_add_u32 v7, v7, v8
          s_mul_i32 s85, {s_i}, {64*2560}
          s_add_u32 s85, s85, s84
          s_lshl_b32 s86, {s_wave}, 6
          s_add_u32 s85, s85, s86''')
    for tm in range(2):
        b = FR + 64 * tm
        A(f's_waitcnt lgkmcnt({15 if tm == 0 else 0})')
        if tm == 0: A('s_waitcnt lgkmcnt(0)')
        for r in range(16):
            A(f'v_add_f32 v{b+r}, v{b+r}, v{b+16+r}\nv_add_f32 v{b+32+r}, v{b+32+r}, v{b+48+r}')
        for r in range(16): A(f'v_add_f32 v{b+r}, v{b+r}, v{b+32+r}')
        for r in range(8): A(f'v_cvt_pk_bf16_f32 v{b+16+r}, v{b+2*r}, v{b+2*r+1}')
        for hh in range(2):
            A(f'v_permlane32_swap_b32 v{b+16+4*hh}, v{b+16+4*hh+2}\nv_permlane32_swap_b32 v{b+16+4*hh+1}, v{b+16+4*hh+3}')
        for hh in range(2):
            A(f'buffer_store_dwordx4 {vr(b+16+4*hh,4)}, v7, {srd(S_OUT)}, s85 offen offset:{32*hh} {OFL[0]}')
        A(f's_add_u32 s85, s85, {32*2560}')
    A('s_waitcnt lgkmcnt(0)\ns_barrier\ns_branch L_next')

def j5(A):
    A(f'''L_j5:
          s_cmp_eq_u32 {s_j}, 5
          s_cbranch_scc1 L_next
          s_mov_b32 s80, {F_CP}''')
    wait_words(A, 's80', 1, 4, 32, barrier=False)
    A(f's_lshr_b32 s80, {s_i}, 2\ns_lshl_b32 s80, s80, 7\ns_add_u32 s80, s80, {F_C4}')
    wait_words(A, 's80', 1, 4, 32)
    A(f'''s_lshl_b32 s85, {s_wave}, 3
          s_add_u32 s85, s85, 8
          s_cmp_eq_u32 {s_wave}, 0
          s_cselect_b32 s85, 0, s85
          s_cselect_b32 s83, 2, 1
          s_mul_i32 s80, {s_i}, 80
          s_add_u32 s80, s80, s85
          s_lshl_b32 s80, s80, 10
          s_add_u32 s80, s80, {OA}
          s_add_u32 s81, s80, {40*1024}
          s_mul_i32 s82, {s_j}, 296
          s_add_u32 s82, s82, s85
          s_add_u32 s82, s82, 256
          s_lshl_b32 s82, s82, 12
          s_add_u32 s82, s82, {WF}
          s_lshl_b32 s84, {s_j}, 8
          s_branch L_fg''')

def j7(A):
    A(f'''L_j7:
          s_cmp_eq_u32 {s_j}, 5
          s_cbranch_scc1 L_next
          s_cmp_ge_u32 {s_i}, 27
          s_cbranch_scc1 L_next
          s_lshl_b32 s80, {s_i}, 6
          s_add_u32 s80, s80, {F_C6}''')
    wait_words(A, 's80', 1, 4, 6)
    A(f'''s_lshl_b32 s85, {s_wave}, 6
          s_mov_b32 s83, 8
          s_lshl_b32 s80, {s_i}, 9
          s_add_u32 s80, s80, s85
          s_lshl_b32 s80, s80, 10
          s_add_u32 s80, s80, {OX}
          s_add_u32 s81, s80, {256*1024}
          s_mul_i32 s82, {s_j}, 296
          s_add_u32 s82, s82, s85
          s_lshl_b32 s82, s82, 12
          s_add_u32 s82, s82, {WF}
          s_lshl_b32 s84, {s_j}, 8
          s_add_u32 s84, s84, 1280
          s_branch L_fg''')

def j6(A, OPT):
    Q = 32; K = 64; V = 96; KMr = 128; VMr = 160; SX = 176; SM = 192; O = 32; PX = 208; PM = 216; T = 224
    VA16 = 4; VKM = 5; VVM = 6; VQ = 7
    s_p = 's80'; s_seg = 's81'; s_h = 's82'; s_b = 's83'
    A(f'''L_j6:
          s_cmp_ge_u32 {s_i}, 27
          s_cbranch_scc1 L_next
          s_lshl_b32 {s_p}, {s_j}, 2
          s_add_u32 {s_p}, {s_p}, {s_wave}
          s_lshl_b32 s87, {s_i}, 1
          s_lshl_b32 s88, {s_i}, 6
          s_mov_b32 s89, 64
          L_j6_go:
          v_lshlrev_b32 v{VA16}, 4, v{V_LANE}
          v_and_b32 v2, 7, v{V_LANE}
          v_lshrrev_b32 v3, 5, v{V_LANE}
          v_lshlrev_b32 v{VKM}, 3, v3
          v_add_u32 v{VKM}, v{VKM}, v2
          v_lshlrev_b32 v{VKM}, 4, v{VKM}
          v_and_b32 v2, 31, v{V_LANE}
          v_lshlrev_b32 v{VVM}, 4, v2
          v_lshlrev_b32 v{VQ}, 3, v3
          v_add_u32 v{VVM}, v{VVM}, v{VQ}
          v_lshlrev_b32 v3, 2, v3
          v_sub_u32 v{VQ}, v2, v3
          L_j6_loop:
          s_lshr_b32 {s_seg}, {s_p}, 5
          s_add_u32 {s_seg}, {s_seg}, s87
          s_and_b32 {s_h}, {s_p}, 31
          s_lshr_b32 s84, {s_seg}, 3
          s_lshl_b32 s85, s84, 7
          s_lshr_b32 s86, {s_h}, 1
          s_lshl_b32 s86, s86, 2
          s_add_u32 s85, s85, s86
          s_add_u32 s85, s85, {F_T1}''')
    wait_words(A, 's85', 2, 64, 2, barrier=False, allwaves=True)
    A(f's_lshl_b32 s85, s84, 6\ns_add_u32 s85, s85, s86\ns_add_u32 s85, s85, {F_T2}')
    wait_words(A, 's85', 1, 4, 1, barrier=False, allwaves=True)
    A(f'''s_lshl_b32 {s_b}, {s_seg}, 5
          s_add_u32 {s_b}, {s_b}, {s_h}
          s_lshl_b32 s84, {s_b}, 13''')
    for base, reg in ((QX, Q), (KX, K), (VX, V)):
        A(f's_add_u32 s85, s84, {base}\ns_add_u32 s86, s85, 4096')
        for u in range(8):
            A(f'buffer_load_dwordx4 {vr(reg+4*u,4)}, v{VA16}, {srd(S_WS)}, {"s85" if u < 4 else "s86"} offen offset:{(u%4)*1024}')
    for tn in range(4): A(f'v_mov_b32 v{VMr+4*tn+2}, 0\nv_mov_b32 v{VMr+4*tn+3}, 0')
    A(f'v_mov_b32 v{PM+2}, 0\nv_mov_b32 v{PM+3}, 0')
    A('s_waitcnt vmcnt(8)')
    for u in range(8):
        A(f'v_mfma_f32_32x32x16_bf16 {vr(SX,16)}, {vr(K+4*u,4)}, {vr(Q+4*u,4)}, {vr(SX,16) if u else 0}')
    A(f'v_mov_b32 v{T+2}, {NINF}')
    for r in range(16):
        A(f'v_cmp_le_i32 vcc, {8*(r//4) + r%4}, v{VQ}\nv_cndmask_b32 v{SX+r}, v{T+2}, v{SX+r}, vcc')
    A(f'v_max3_f32 v{T}, v{SX}, v{SX+1}, v{SX+2}')
    for r in range(3, 15, 2): A(f'v_max3_f32 v{T}, v{T}, v{SX+r}, v{SX+r+1}')
    if OPT.get('nochain', '0') != '1':
        A(f's_lshl_b32 s85, {s_h}, 8\ns_add_u32 s85, s85, {F_CH}\ns_add_u32 s86, {s_seg}, 1')
        wait_words(A, 's85', 2, 8192, 's86', barrier=False, allwaves=True, sleep=1, far=int(OPT.get('far', '0')))
    stamp(A, 13)
    A(f's_lshl_b32 s84, {s_b}, 11\ns_add_u32 s85, s84, {KM}\ns_add_u32 s86, s84, {VM}')
    for u in range(8):
        A(f'buffer_load_dwordx4 {vr(KMr+4*u,4)}, v{VKM}, {srd(S_WS)}, s85 offen offset:{u*256}')
    for tn in range(4):
        A(f'buffer_load_dwordx2 {vr(VMr+4*tn,2)}, v{VVM}, {srd(S_WS)}, s86 offen offset:{tn*512}')
    A('s_waitcnt vmcnt(4)')
    for u in range(8):
        A(f'v_mfma_f32_32x32x16_bf16 {vr(SM,16)}, {vr(KMr+4*u,4)}, {vr(Q+4*u,4)}, {vr(SM,16) if u else 0}')
    A(f'''v_max3_f32 v{T}, v{T}, v{SX+15}, v{SM}
          v_max3_f32 v{T}, v{T}, v{SM+1}, v{SM+2}
          v_max_f32 v{T}, v{T}, v{SM+3}
          v_mov_b32 v{T+1}, v{T}
          v_permlane32_swap_b32 v{T}, v{T+1}
          v_max_f32 v{T}, v{T}, v{T+1}
          s_mov_b32 s84, {f2u(LOG2E * 128 ** -0.5)}
          v_mul_f32 v{T}, s84, v{T}''')
    regs = [SX + r for r in range(16)] + [SM + r for r in range(4)]
    for r in regs: A(f'v_fma_f32 v{r}, v{r}, s84, -v{T}')
    for r in regs: A(f'v_exp_f32 v{r}, v{r}')
    for r in range(8): A(f'v_cvt_pk_bf16_f32 v{PX+r}, v{SX+2*r}, v{SX+2*r+1}')
    for r in range(2): A(f'v_cvt_pk_bf16_f32 v{PM+r}, v{SM+2*r}, v{SM+2*r+1}')
    A('s_waitcnt vmcnt(0)')
    stamp(A, 12)
    for tn in range(4):
        o = vr(O + 16 * tn, 16)
        A(f'''v_mfma_f32_32x32x16_bf16 {o}, {vr(V+8*tn,4)}, {vr(PX,4)}, 0
              v_mfma_f32_32x32x16_bf16 {o}, {vr(V+8*tn+4,4)}, {vr(PX+4,4)}, {o}
              v_mfma_f32_32x32x16_bf16 {o}, {vr(VMr+4*tn,4)}, {vr(PM,4)}, {o}''')
    A(f'v_add_f32 v{T}, v{regs[0]}, v{regs[1]}')
    for r in regs[2:]: A(f'v_add_f32 v{T}, v{T}, v{r}')
    A(f'''v_mov_b32 v{T+1}, v{T}
          v_permlane32_swap_b32 v{T}, v{T+1}
          v_add_f32 v{T}, v{T}, v{T+1}
          v_rcp_f32 v{T}, v{T}
          s_lshl_b32 s84, {s_b}, 13
          s_add_u32 s85, s84, {OX}
          s_add_u32 s86, s85, 4096''')
    for tn in range(4):
        o = O + 16 * tn
        for r in range(16): A(f'v_mul_f32 v{o+r}, v{o+r}, v{T}')
        for r in range(8): A(f'v_cvt_pk_bf16_f32 v{KMr+8*tn+r}, v{o+2*r}, v{o+2*r+1}')
        for u in range(2):
            A(f'buffer_store_dwordx4 {vr(KMr+8*tn+4*u,4)}, v{VA16}, {srd(S_WS)}, {"s85" if tn < 2 else "s86"} offen offset:{((2*tn+u)%4)*1024} sc1')
    A(f'''s_add_u32 {s_p}, {s_p}, 24
          s_cmp_lt_u32 {s_p}, s89
          s_cbranch_scc1 L_j6_loop
          s_cmp_lg_u32 s89, 0
          s_cbranch_scc1 L_j6_sig
          s_lshl_b32 s80, {s_h}, 2
          s_add_u32 s80, s80, s88
          v_mov_b32 v2, 1
          v_mov_b32 v3, 0
          s_mov_b64 exec, 1
          s_waitcnt vmcnt(0)
          buffer_store_dword v2, v3, {srd(S_WS)}, s80 offen sc1
          s_mov_b64 exec, -1
          s_branch L_next
          L_j6_sig:
          s_add_u32 s80, s88, {F_C6}''')
    signal_add(A, 's80')
    A('s_branch L_next')

def fast(A, OPT):
    VA16 = 4; VO = 5; ACC = 8; AF = 32
    A(f'''L_fast2:
          s_add_u32 s87, {s_j}, 4
          s_cmp_lt_u32 {s_i}, 27
          s_cbranch_scc0 L_fa2_hi
          s_cmp_ge_u32 {s_j}, 4
          s_cbranch_scc1 L_f7_go
          s_branch L_exit
          L_fa2_hi:
          s_cmp_ge_u32 {s_j}, 2
          s_cbranch_scc1 L_exit
          s_mul_i32 s82, {s_j}, 5
          s_add_u32 s82, s82, {s_i}
          s_add_u32 s82, s82, {70-27}
          s_branch L_fa_6
          L_fa_hi:
          s_mul_i32 s82, {s_j}, 5
          s_add_u32 s82, s82, {s_i}
          s_sub_u32 s82, s82, 27
          L_fa_6:
          s_lshr_b32 s87, s82, 3
          s_lshl_b32 s88, s87, 7
          s_add_u32 s88, s88, {F_X}
          s_add_u32 s87, s87, 54
          s_and_b32 s80, s82, 7
          s_lshl_b32 s80, s80, 2
          s_add_u32 s80, s80, {s_wave}
          s_mov_b32 s89, 0
          s_branch L_j6_go
          L_fast:
          s_cmp_ge_u32 {s_i}, 27
          s_cbranch_scc1 L_fa_hi
          s_cmp_ge_u32 {s_i}, 20
          s_cbranch_scc1 L_exit
          s_mov_b32 s80, {F_CP}''')
    wait_words(A, 's80', 1, 4, 32)
    A(f'''v_lshlrev_b32 v{VA16}, 4, v{V_LANE}
          s_lshr_b32 s82, {s_i}, 2
          s_mul_i32 s82, s82, 296
          s_lshl_b32 s83, {s_wave}, 6
          s_add_u32 s82, s82, s83
          s_lshl_b32 s82, s82, 2
          s_and_b32 s83, {s_i}, 3
          s_add_u32 s82, s82, s83
          s_lshl_b32 s82, s82, 10
          s_add_u32 s82, s82, {WF}''')
    for k in range(64):
        A(f'buffer_load_dwordx4 {ar(4*k,4)}, v{VA16}, {srd(S_WS)}, s82 offen\ns_add_u32 s82, s82, 4096')
        if k % 32 == 31: A('s_waitcnt vmcnt(0)')
    A(f'''s_cmp_eq_u32 {s_j}, 5
          s_cselect_b32 s82, 30, 50
          s_add_u32 s82, s82, {s_i}
          s_cmp_ge_u32 {s_j}, 4
          s_cbranch_scc1 L_fa_6
          s_mov_b32 s87, {s_j}
          L_f7_go:
          v_lshlrev_b32 v{VA16}, 4, v{V_LANE}
          v_and_b32 v{VO}, 31, v{V_LANE}
          v_mul_u32_u24 v{VO}, 2560, v{VO}
          v_lshrrev_b32 v6, 5, v{V_LANE}
          v_lshl_add_u32 v{VO}, v6, 3, v{VO}
          s_lshl_b32 s83, {s_wave}, 12
          v_add_u32 v6, s83, v{VA16}
          s_lshl_b32 s83, {s_wave}, 10
          v_add_u32 v7, s83, v{VA16}
          L_f7_loop:
          s_lshl_b32 s80, s87, 7
          s_add_u32 s80, s80, {F_X}
          s_add_u32 s81, s87, 54
          s_lshl_b32 s82, s81, 2
          s_add_u32 s82, s82, {s_wave}
          s_lshl_b32 s82, s82, 16
          s_add_u32 s82, s82, {OX}
          s_mul_i32 s84, s81, {32*2560}
          s_lshl_b32 s83, {s_i}, 6
          s_add_u32 s84, s84, s83
          s_lshl_b32 s83, {s_wave}, 4
          s_add_u32 s84, s84, s83
          s_add_u32 s84, s84, 1280''')
    A(f'''s_cmp_ge_u32 {s_j}, 4
          s_cselect_b32 s85, 16, 0
          v_and_b32 v8, 15, v{V_LANE}
          v_add_u32 v8, s85, v8
          v_lshlrev_b32 v8, 4, v8
          v_lshrrev_b32 v9, 5, v{V_LANE}
          v_lshl_add_u32 v8, v9, 9, v8
          v_bfe_u32 v9, v{V_LANE}, 4, 1
          v_lshl_add_u32 v31, v9, 10, v8''')
    if OPT.get('aw') == '1': wait_words(A, 's80', 32, 4, 1, barrier=False, allwaves=True, sleep=int(OPT.get('fs', '1')))
    else: wait_words(A, 's80', 32, 4, 1, sleep=int(OPT.get('fs', '1')))
    stamp(A, 14)
    A('s_cmp_ge_u32 s87, 8\ns_cbranch_scc1 L_f7h')
    def ld(k):
        A(f'buffer_load_dwordx4 {vr(AF+4*(k%56),4)}, v{VA16}, {srd(S_WS)}, s82 offen offset:{(k%4)*1024}')
        if k % 4 == 3: A('s_add_u32 s82, s82, 4096')
    for k in range(56): ld(k)
    for k in range(64):
        A(f's_waitcnt vmcnt({55 if k < 8 else 63-k})')
        a = ACC + 16 * 0
        A(f'v_mfma_f32_32x32x16_bf16 {vr(a,16)}, {ar(4*k,4)}, {vr(AF+4*(k%56),4)}, {vr(a,16) if k else 0}')
        if k < 8: ld(56 + k)
    stamp(A, 15)
    for q in range(4): A(f'ds_write_b128 v6, {vr(ACC+4*q,4)} offset:{q*1024}')
    A('s_waitcnt lgkmcnt(0)\ns_barrier')
    for w in range(4): A(f'ds_read_b128 {vr(AF+4*w,4)}, v7 offset:{w*4096}')
    A('s_waitcnt lgkmcnt(0)')
    for r in range(4): A(f'v_add_f32 v{AF+r}, v{AF+r}, v{AF+4+r}\nv_add_f32 v{AF+8+r}, v{AF+8+r}, v{AF+12+r}')
    for r in range(4): A(f'v_add_f32 v{AF+r}, v{AF+r}, v{AF+8+r}')
    A(f'''v_cvt_pk_bf16_f32 v{AF+4}, v{AF}, v{AF+1}
          v_cvt_pk_bf16_f32 v{AF+5}, v{AF+2}, v{AF+3}
          buffer_store_dwordx2 {vr(AF+4,2)}, v{VO}, {srd(S_OUT)}, s84 offen {OFL[1]}
          s_barrier
          s_add_u32 s87, s87, 4
          s_cmp_lt_u32 s87, 10
          s_cbranch_scc1 L_f7_loop
          s_branch L_next
          L_f7h:''')
    HF = 40
    for m in range(32):
        A(f'buffer_load_dwordx4 {vr(HF+4*m,4)}, v31, {srd(S_WS)}, s82 offen offset:{(m%2)*2048}')
        if m % 2 == 1: A('s_add_u32 s82, s82, 4096')
    A(f'v_and_b32 v2, 16, v{V_LANE}\nv_cmp_eq_u32 vcc, 0, v2\ns_mul_i32 s85, s85, 2560\ns_add_u32 s84, s84, s85')
    for m in range(32):
        A(f's_waitcnt vmcnt({31-m})')
        for e in range(2):
            a = ACC + 16 * e
            A(f'v_mfma_f32_32x32x16_bf16 {vr(a,16)}, {ar(8*m+4*e,4)}, {vr(HF+4*m,4)}, {vr(a,16) if m else 0}')
    stamp(A, 15)
    for r in range(16): A(f'v_cndmask_b32 v{ACC+r}, v{ACC+16+r}, v{ACC+r}, vcc')
    for q in range(4): A(f'ds_write_b128 v6, {vr(ACC+4*q,4)} offset:{q*1024}')
    A('s_waitcnt lgkmcnt(0)\ns_barrier\ns_mov_b64 exec, vcc')
    for w in range(8): A(f'ds_read_b128 {vr(HF+4*w,4)}, v7 offset:{(w//2)*4096 + (w%2)*256}')
    A('s_waitcnt lgkmcnt(0)')
    for st in (16, 8, 4):
        for r in range(st): A(f'v_add_f32 v{HF+r}, v{HF+r}, v{HF+st+r}')
    A(f'''v_cvt_pk_bf16_f32 v{HF+4}, v{HF}, v{HF+1}
          v_cvt_pk_bf16_f32 v{HF+5}, v{HF+2}, v{HF+3}
          buffer_store_dwordx2 {vr(HF+4,2)}, v{VO}, {srd(S_OUT)}, s84 offen {OFL[1]}
          s_mov_b64 exec, -1
          s_branch L_next''')

def emit(A, OPT):
    OFL[0] = ['', 'sc1', 'sc0 sc1'][int(OPT.get('ofl', '0'))]; OFL[1] = ['', 'sc1', 'sc0 sc1'][int(OPT.get('ofl2', '0'))]
    j4(A); prep(A); j5(A); j7(A); fgemm(A); j6(A, OPT); fast(A, OPT)
```

```python
from common import *
V_LANE = 1
VTMP = 2
DEV = {'stamp': False}

def stamp(A, idx, allwaves=False):
    if not DEV['stamp']: return
    sk = A.lab('stk')
    A(f'''s_cmp_lg_u32 {s_wave}, 0
          s_cbranch_scc1 {sk}
          {DEV.get("clk","s_memrealtime")} s[98:99]
          s_lshl_b32 s97, {s_wg}, 9
          s_add_u32 s97, s97, {DBGT + idx*8}
          s_waitcnt lgkmcnt(0)
          v_mov_b32 v2, s98
          v_mov_b32 v3, s99
          s_mov_b64 s[98:99], exec
          s_mov_b64 exec, 1
          v_mov_b32 v0, 0
          buffer_store_dwordx2 v[2:3], v0, {srd(S_WS)}, s97 offen
          s_mov_b64 exec, s[98:99]
          {sk}:''')

def signal_add(A, soff, inc=1):
    sk = A.lab('sg')
    A(f'''s_waitcnt vmcnt(0) lgkmcnt(0)
          s_barrier
          s_cmp_lg_u32 {s_wave}, 0
          s_cbranch_scc1 {sk}
          s_mov_b64 exec, 1
          v_mov_b32 v2, {inc}
          v_mov_b32 v3, 0
          buffer_atomic_add v2, v3, {srd(S_WS)}, {soff} offen sc1
          s_mov_b64 exec, -1
          {sk}:''')

def wait_words(A, soff, nlanes, stride, val, barrier=True, allwaves=False, sleep=4, far=0):
    sk = A.lab('wt'); lp = A.lab('wl')
    if not allwaves:
        A(f's_cmp_lg_u32 {s_wave}, 0\ns_cbranch_scc1 {sk}')
    A(f'''s_mov_b64 exec, {hex((1 << nlanes) - 1)}
          v_mul_u32_u24 v3, {stride}, v{V_LANE}
          {lp}:
          buffer_load_dword v2, v3, {srd(S_WS)}, {soff} offen sc1
          s_waitcnt vmcnt(0)
          v_cmp_gt_u32 vcc, {val}, v2
          s_cbranch_vccz {lp}_d''')
    if far:
        A(f'''v_readfirstlane_b32 s90, v2
              s_add_u32 s90, s90, 2
              s_cmp_ge_u32 s90, {val}
              s_cbranch_scc1 {lp}_n
              s_sleep {far}
              {lp}_n:''')
    A(f'''s_sleep {sleep}
          s_sub_u32 {s_bud}, {s_bud}, 1
          s_cbranch_scc0 {lp}
          s_mov_b32 {s_bud}, 0
          {lp}_d:
          s_mov_b64 exec, -1
          {sk}:''')
    if barrier: A('s_barrier')

def register(A, v, t):
    sk = A.lab('rg')
    A(f'''s_cmp_lg_u32 {s_wave}, 0
          s_cbranch_scc1 {sk}
          s_getreg_b32 s62, hwreg(HW_REG_XCC_ID)
          s_and_b32 s62, s62, 15
          s_lshl_b32 s62, s62, 2
          s_and_b32 {t}, {s_wg}, 7
          s_mov_b32 s63, 1
          s_cmp_eq_u32 {t}, 0
          s_cselect_b32 s63, 0x401, s63
          s_cmp_eq_u32 {t}, 1
          s_cselect_b32 s63, 0x100001, s63
          s_mov_b64 exec, 1
          v_mov_b32 v{v}, s63
          v_mov_b32 v{v+1}, 0
          buffer_atomic_add v{v}, v{v+1}, {srd(S_DB)}, s62 offen sc1
          s_mov_b64 exec, -1
          {sk}:''')
```

```python
import sys
from common import *
from util import *
import util
import bulk_gemm as G
OPT = dict(a.split('=') for a in sys.argv[2:] if '=' in a)
util.DEV['stamp'] = OPT.get('stamp', '0') == '1'
if OPT.get('clk'): util.DEV['clk'] = 's_memtime'
NOCHAIN = OPT.get('nochain', '0') == '1'
LASTR = int(OPT.get('lastr', '99'))

A = Asm()
G.PFN[0] = int(OPT.get('gpf', '0')); G.WE[0] = int(OPT.get('we', '0'))
KL = NAME + '_kernel'

def startup(A):
    A(f'''s_cmp_ge_u32 s2, 256
          s_cbranch_scc1 L_exit
          s_mov_b32 {s_wg}, s2
          s_load_dwordx16 s[8:23], s[0:1], 0
          s_load_dwordx8 s[24:31], s[0:1], 64
          s_load_dwordx2 s[32:33], s[0:1], 96
          v_lshrrev_b32 v2, 6, v0
          v_and_b32 v{V_LANE}, 63, v0
          v_readfirstlane_b32 {s_wave}, v2
          s_mov_b32 {s_bud}, 200000
          s_waitcnt lgkmcnt(0)''')
    mk_srd(A, S_WS, P_WS, WS_BYTES)
    mk_srd(A, S_OUT, P_OUT, 2048 * 1280 * 2)
    mk_srd(A, S_DB, P_DBG, 256)
    stamp(A, 0)
    A(f'''v_mov_b32 v4, -1
          v_mov_b32 v5, -1
          v_mov_b32 v6, -1
          v_mov_b32 v7, -1
          v_mov_b32 v8, 0
          v_mov_b32 v9, 0
          v_mov_b32 v10, 0
          v_mov_b32 v11, 0
          s_lshl_b32 s62, {s_wave}, 10
          v_lshlrev_b32 v2, 4, v{V_LANE}
          v_add_u32 v2, s62, v2
          s_mul_i32 s62, {s_wg}, 15360
          s_add_u32 s62, s62, {SENT}
          s_add_u32 s63, s62, 4096
          buffer_store_dwordx4 v[4:7], v2, {srd(S_WS)}, s62 offen sc1
          buffer_store_dwordx4 v[4:7], v2, {srd(S_WS)}, s63 offen sc1
          s_add_u32 s62, s62, 8192
          s_add_u32 s63, s63, 8192
          buffer_store_dwordx4 v[4:7], v2, {srd(S_WS)}, s62 offen sc1
          v_cmp_gt_u32 vcc, 3072, v2
          s_and_saveexec_b64 s[64:65], vcc
          buffer_store_dwordx4 v[4:7], v2, {srd(S_WS)}, s63 offen sc1
          s_mov_b64 exec, s[64:65]
          v_cmp_gt_u32 vcc, 128, v2
          s_and_saveexec_b64 s[64:65], vcc
          s_lshl_b32 s62, {s_wg}, 7
          buffer_store_dwordx4 v[8:11], v2, {srd(S_WS)}, s62 offen sc1
          s_mov_b64 exec, s[64:65]
          s_and_b32 s64, {s_wg}, 7
          s_lshr_b32 {s_i}, {s_wg}, 3
          s_sub_u32 {s_j}, s64, 2
          s_cmp_ge_u32 s64, 2
          s_cbranch_scc1 L_bulk
          s_lshl_b32 s64, s64, 5
          s_add_u32 s64, s64, {s_i}
          s_branch L_chain
          L_bulk:''')

def count_all(A, pre=None):
    lp = A.lab('cnt')
    A(f'''s_mov_b64 exec, 0xffff
          v_lshlrev_b32 v3, 2, v{V_LANE}''')
    if pre: A(f'v_mov_b32 v2, v{pre}\ns_branch {lp}_c')
    A(f'''{lp}:
          buffer_load_dword v2, v3, {srd(S_DB)}, 0 offen sc1
          s_waitcnt vmcnt(0)
          {lp}_c:
          s_mov_b32 s68, 0
          s_mov_b32 s66, 1
          s_mov_b32 s67, 1''')
    for y in range(16):
        A(f'''v_readlane_b32 s65, v2, {y}
              s_and_b32 s70, s65, 1023
              s_add_u32 s68, s68, s70
              s_bfe_u32 s70, s65, 0xa000a
              s_cmp_eq_u32 s70, 32
              s_cselect_b32 s66, 0, s66
              s_lshr_b32 s70, s65, 20
              s_cmp_eq_u32 s70, 32
              s_cselect_b32 s67, 0, s67''')
    A(f'''s_cmp_ge_u32 s68, 256
          s_cbranch_scc1 {lp}_d
          s_sleep 2
          s_sub_u32 {s_bud}, {s_bud}, 1
          s_cbranch_scc0 {lp}
          s_mov_b32 {s_bud}, 0
          {lp}_d:
          s_mov_b64 exec, -1''')

def job_gemm_params(A):
    g = G
    A(f'''L_j1:
          s_cmp_eq_u32 {g.s_hf}, 0
          s_cselect_b32 {g.s_inc}, 2, 1
          s_lshl_b32 {g.s_flag}, s81, 2
          s_lshl_b32 s82, s80, 7
          s_add_u32 {g.s_flag}, {g.s_flag}, s82
          s_add_u32 {g.s_flag}, {g.s_flag}, {F_T1}
          s_mov_b32 {g.s_ob}, {KX}
          s_cmp_ge_u32 s81, 16
          s_cselect_b32 {g.s_ori}, 1, 0
          s_cselect_b32 s{S_WT}, s{P_WV}, s{P_WK}
          s_cselect_b32 s{S_WT+1}, s{P_WV+1}, s{P_WK+1}
          s_cselect_b32 {g.s_ob}, {VX}, {g.s_ob}
          s_and_b32 s81, s81, 15
          s_branch L_jB
          L_j2:
          s_lshl_b32 {g.s_flag}, s81, 2
          s_lshl_b32 s82, s80, 6
          s_add_u32 {g.s_flag}, {g.s_flag}, s82
          s_add_u32 {g.s_flag}, {g.s_flag}, {F_T2}
          s_mov_b32 {g.s_ori}, 0
          s_mov_b32 s{S_WT}, s{P_WQ}
          s_mov_b32 s{S_WT+1}, s{P_WQ+1}
          s_mov_b32 {g.s_ob}, {QX}
          L_jB:
          s_mov_b32 s{S_WT+2}, {640*8192}
          s_mov_b32 s{S_WT+3}, 0x20000''')
    mk_srd(A, S_XS, P_BX, 2048 * 1280)
    A(f'''s_mov_b32 {g.s_ld}, 8192
          s_mov_b32 {g.s_atype}, 64
          s_lshl_b32 {g.s_wo}, s81, 9
          s_mov_b32 {g.s_epi}, 0
          s_mov_b32 {g.s_stm}, {32*8192}
          s_mov_b32 {g.s_stn}, 2048
          s_and_b32 s82, {s_wave}, 1
          s_lshl_b32 s82, s82, 2
          s_lshl_b32 s83, s80, 3
          s_add_u32 s82, s82, s83
          s_lshl_b32 s82, s82, 5
          s_lshr_b32 s83, {s_wave}, 1
          s_add_u32 s82, s82, s83
          s_lshl_b32 s83, s81, 1
          s_add_u32 s82, s82, s83
          s_lshl_b32 s82, s82, 13
          s_add_u32 {g.s_ob}, {g.s_ob}, s82
          s_branch L_gemm
          L_j3:
          s_lshl_b32 {g.s_flag}, s81, 7
          s_add_u32 {g.s_flag}, {g.s_flag}, {F_C3}''')
    mk_srd(A, S_WT, P_AWQKV, 640 * 3840)
    mk_srd(A, S_XS, P_AX, 2048 * 1280)
    A(f'''s_mov_b32 {g.s_ld}, 3840
          s_mov_b32 {g.s_atype}, 40
          s_mul_i32 {g.s_wo}, s81, 320
          s_lshr_b32 s82, s81, 2
          s_add_u32 {g.s_epi}, s82, 1
          s_mov_b32 {g.s_stm}, 1536
          s_mov_b32 {g.s_ob}, {KA}
          s_cmp_eq_u32 s82, 2
          s_cselect_b32 {g.s_ori}, 1, 0
          s_cselect_b32 {g.s_stm}, 2048, {g.s_stm}
          s_cselect_b32 {g.s_ob}, {VA}, {g.s_ob}
          s_cmp_eq_u32 s82, 0
          s_cselect_b32 {g.s_ob}, {QA}, {g.s_ob}
          s_lshl_b32 {g.s_stn}, {g.s_stm}, 6
          s_and_b32 s81, s81, 3
          s_lshl_b32 s81, s81, 3
          s_lshr_b32 s83, {s_wave}, 1
          s_lshl_b32 s83, s83, 2
          s_add_u32 s81, s81, s83
          s_lshl_b32 s81, s81, 6
          s_and_b32 s82, {s_wave}, 1
          s_lshl_b32 s82, s82, 2
          s_lshl_b32 s83, s80, 3
          s_add_u32 s82, s82, s83
          s_add_u32 s81, s81, s82
          s_mul_i32 s81, s81, {g.s_stm}
          s_add_u32 {g.s_ob}, {g.s_ob}, s81
          L_gemm:
          s_mul_i32 {g.s_xo}, s80, {256*1280}''')
    G.gemm_setup(A)
    A(f's_cmp_lg_u32 {g.s_hf}, 0\ns_cbranch_scc1 L_gemm_h')
    A(f's_cmp_lg_u32 {g.s_ori}, 0\ns_cbranch_scc1 L_gemm_o1')
    G.gemm_main(A, 0)
    A(f'''s_cmp_eq_u32 {g.s_epi}, 1
          s_cbranch_scc1 L_epi_aq
          s_cmp_eq_u32 {g.s_epi}, 2
          s_cbranch_scc1 L_epi_ak
          s_branch L_epi_b
          L_gemm_o1:''')
    G.gemm_main(A, 1)
    A(f's_cmp_eq_u32 {g.s_epi}, 3\ns_cbranch_scc1 L_epi_av\nL_epi_b:')
    G.gemm_epi(A, 'B'); A('s_branch L_gemm_end\nL_epi_aq:')
    G.gemm_epi(A, 'AQ'); A('s_branch L_gemm_end\nL_epi_ak:')
    G.gemm_epi(A, 'AK'); A('s_branch L_gemm_end\nL_epi_av:')
    G.gemm_epi(A, 'AV'); A('s_branch L_gemm_end\nL_gemm_h:')
    A(f'''s_sub_u32 s82, {g.s_hf}, 1
          s_and_b32 s83, {s_wave}, 1
          s_cmp_eq_u32 s82, s83
          s_cselect_b64 {g.s_xm}, -1, 0
          s_lshl_b32 s83, s82, 13
          s_mul_i32 s82, s82, {g.s_stm}
          s_lshl_b32 s82, s82, 1
          s_add_u32 {g.s_ob}, {g.s_ob}, s82''')
    for u in range(4): A(f'v_add_u32 v{G.XA+u}, s83, v{G.XA+u}')
    A(f's_cmp_lg_u32 {g.s_ori}, 0\ns_cbranch_scc1 L_gemm_h1')
    G.gemm_main(A, 0, True)
    A('s_branch L_epi_h\nL_gemm_h1:')
    G.gemm_main(A, 1, True)
    A('L_epi_h:')
    G.gemm_epi(A, 'B', 2); A('L_gemm_end:')
    A(f's_or_b32 s82, {s_rnd}, {s_wave}\ns_cmp_lg_u32 s82, 0\ns_cbranch_scc1 L_gemm_sig')
    count_all(A, G.VCNT)
    A('L_gemm_sig:')
    signal_add(A, g.s_flag, g.s_inc)
    A('s_branch L_next')

def bulk_dispatch(A):
    A(f'''s_mov_b32 {s_rnd}, -1
          L_next:
          s_add_u32 {s_rnd}, {s_rnd}, 1''')
    if util.DEV['stamp']:
        for r in range(12):
            A(f's_cmp_lg_u32 {s_rnd}, {r}\ns_cbranch_scc1 L_st{r}')
            stamp(A, 1 + r)
            A(f'L_st{r}:')
    H = lambda kv: f's_mov_b32 s80, 0\ns_add_u32 s81, s85, {16*kv}\ns_add_u32 {G.s_hf}, s84, 1\ns_branch L_j1'
    J1 = lambda r, kv: f's_add_u32 s80, s84, {r}\ns_add_u32 s81, s85, {16*kv}\ns_branch L_j1'
    J17 = f's_mov_b32 s80, 7\ns_mov_b32 s81, {s_i}\ns_branch L_j1'
    J2 = lambda r: f's_add_u32 s80, s84, {r}\ns_mov_b32 s81, s85\ns_branch L_j2'
    J3 = lambda t: f's_lshr_b32 s80, {s_i}, 2\ns_and_b32 s81, {s_i}, 3\ns_add_u32 s81, s81, {4*t}\ns_branch L_j3'
    J4 = lambda h: f's_mov_b32 s80, {h}\ns_branch L_j4'
    T = ['s_branch L_j5', 's_branch L_j6', 's_branch L_j7', 's_branch L_fast', 's_branch L_fast2']
    sched = [[H(0), J1(5, 0), J17, J2(6), J4(24)] + T, [H(1), J1(5, 1), J2(0), J4(28)] + T,
             [J1(1, 0), J3(0), J4(0), J4(12)] + T, [J1(1, 1), J3(1), J4(4), J4(16)] + T,
             [J1(3, 0), J3(2), J4(8), J4(20)] + T, [J1(3, 1), J2(2), J2(4), 's_branch L_prep'] + T]
    if OPT.get('sch', '1') == '1':
        sched = [[H(0), J1(3, 0), J1(5, 0), J2(6), J4(24)] + T, [H(1), J1(3, 1), J1(5, 1), J4(28)] + T,
                 [J1(1, 0), J3(2), J4(0), J4(12)] + T, [J1(1, 1), J17, J4(4), J4(16)] + T,
                 [J3(0), J2(0), J4(8), J4(20)] + T, [J3(1), J2(2), J2(4), 's_branch L_prep'] + T]
    if OPT.get('sch') == '2':
        sched = [[H(0), J1(1, 0), J1(5, 0), J2(6), J4(24)] + T, [H(1), J1(1, 1), J1(5, 1), J4(28)] + T,
                 [J3(2), J1(3, 0), J4(0), J4(12)] + T, [J2(0), J1(3, 1), J4(4), J4(16)] + T,
                 [J3(0), J17, J4(8), J4(20)] + T, [J3(1), J2(2), J2(4), 's_branch L_prep'] + T]
    A(f'''s_lshr_b32 s84, {s_i}, 4
          s_and_b32 s85, {s_i}, 15
          s_mov_b32 {G.s_hf}, 0
          s_mov_b32 {G.s_inc}, 1
          s_lshl_b32 s82, {s_j}, 4
          s_add_u32 s82, s82, {s_rnd}''')
    for j in range(6):
        for r in range(len(sched[j])): A(f's_cmp_eq_u32 s82, {16*j+r}\ns_cbranch_scc1 L_s{j}_{r}')
    A('s_branch L_exit')
    for j in range(6):
        for r in range(len(sched[j])): A(f'L_s{j}_{r}:\n' + sched[j][r])

startup(A)
bulk_dispatch(A)
job_gemm_params(A)
try:
    import bulk_rest as R
    R.emit(A, OPT)
except ImportError:
    A('L_j4:\nL_prep:\nL_j5:\nL_j6:\nL_j7:\ns_branch L_next')
A('L_chain:')
if OPT.get('clktest'):
    A(f'''s_cmp_lg_u32 {s_wave}, 0
          s_cbranch_scc1 L_exit
          s_lshl_b32 s70, {s_wg}, 9
          s_add_u32 s70, s70, {DBGT+64}
          s_mov_b32 s71, 24
          v_mov_b32 v0, 0
          s_mov_b64 exec, 1
          L_ck:
          s_memtime s[72:73]
          s_memrealtime s[74:75]
          s_waitcnt lgkmcnt(0)
          v_mov_b32 v4, s72
          v_mov_b32 v5, s73
          v_mov_b32 v6, s74
          v_mov_b32 v7, s75
          buffer_store_dwordx4 v[4:7], v0, {srd(S_WS)}, s70 offen
          s_add_u32 s70, s70, 16
          s_mov_b32 s76, 1500
          L_ck2:
          v_add_u32 v8, v8, v8
          s_sub_u32 s76, s76, 1
          s_cbranch_scc0 L_ck2
          s_sub_u32 s71, s71, 1
          s_cbranch_scc0 L_ck''')
if not NOCHAIN:
    import importlib; C = importlib.import_module(OPT.get('chain', 'chain2'))
    C.emit(A, OPT, count_all)
A('L_exit:\ns_endpgm')

hdr = open('cdna_kernels/' + NAME + '.s.ref').read().split('\n')
head = [l for l in hdr if l.startswith(';') and '@launch' not in l and not l.startswith('; Override') and not l.startswith('; grid=')]
body = A.finish()
out = '\n'.join(head) + '\n; @launch grid=(256,1,1) block=(256,1,1) lds=163840\n'
out += f'''.amdgcn_target "amdgcn-amd-amdhsa--gfx950"
.text
.globl {KL}
.p2align 8
.type {KL},@function
{KL}:
''' + body + f'''.section .rodata,"a"
.p2align 6
.amdhsa_kernel {KL}
  .amdhsa_next_free_vgpr 512
  .amdhsa_next_free_sgpr 102
  .amdhsa_accum_offset 256
  .amdhsa_group_segment_fixed_size 0
  .amdhsa_kernarg_size 104
  .amdhsa_user_sgpr_count 2
  .amdhsa_user_sgpr_kernarg_segment_ptr 1
  .amdhsa_system_sgpr_workgroup_id_x 1
.end_amdhsa_kernel
'''
open(sys.argv[1], 'w').write(out)
print('lines', out.count('\n'), 'bytes', len(out), 'pads', A.npad)
```
